```python
import torch

def _softmax(x, axis=-1):
    return torch.softmax(x, dim=axis)
def _gelu(x):
    return torch.nn.functional.gelu(x, approximate="tanh")
def _silu(x):
    return torch.nn.functional.silu(x)
def _sigmoid(x):
    return torch.sigmoid(x)
def _layernorm(x, axis=-1, eps=1e-5):
    m = x.mean(dim=axis, keepdim=True)
    v = x.var(dim=axis, keepdim=True, unbiased=False)
    return (x - m) / torch.sqrt(v + eps)
def _scatter_add(tgt, idx, src, axis=0):
    return tgt.clone().index_add_(axis, idx, src)
def _segment_sum(src, seg, n):
    out = torch.zeros((n,) + src.shape[1:], dtype=src.dtype)
    return out.index_add_(0, seg, src)
def _pad(x, pw):
    flat = tuple(v for pair in reversed(pw) for v in pair)
    return torch.nn.functional.pad(x, flat)

kernel_name = 'concat_heads__sliding_block_cached__gqa_block_cached__decode'

def setup_inputs():

    _w = (lambda a: (lambda t: t.to(torch.bfloat16) if t.is_floating_point() else t)(torch.as_tensor(a)))
    def _A_setup():
        B, Sq, D = 2, 1, 512
        Hq, Hkv, Sk, Dh = 32, 8, 8192, 128
        assert Hq % Hkv == 0, (Hq, Hkv)
        return {
            "x": _w((lambda *s: torch.randn(*s, dtype=torch.bfloat16) * 0.2)(B, Sq, D)),
            "k_cache": _w((lambda *s: torch.randn(*s, dtype=torch.bfloat16) * 3.2)(B, Hkv, Sk, Dh)),
            "v_cache": _w((lambda *s: torch.randn(*s, dtype=torch.bfloat16) * 1.6)(B, Hkv, Sk, Dh)),
            "wq": _w((lambda *s: torch.randn(*s, dtype=torch.bfloat16) * 3.2)(D, Hq * Dh) * (D ** -0.5)),
            "wo": _w((lambda *s: torch.randn(*s, dtype=torch.bfloat16) * 1.6)(Hq * Dh, D) * ((Hq * Dh) ** -0.5)),
        }
    _A_in = _A_setup()

    def _B_setup():
        B, Sq, D = 2, 1, 512
        Hq, Hkv, Sk, Dh = 32, 8, 8192, 128
        assert Hq % Hkv == 0, (Hq, Hkv)
        return {
            "x": _w((lambda *s: torch.randn(*s, dtype=torch.bfloat16) * 0.4)(B, Sq, D)),
            "k_cache": _w((lambda *s: torch.randn(*s, dtype=torch.bfloat16) * 3.2)(B, Hkv, Sk, Dh)),
            "v_cache": _w((lambda *s: torch.randn(*s, dtype=torch.bfloat16) * 0.8)(B, Hkv, Sk, Dh)),
            "wq": _w((lambda *s: torch.randn(*s, dtype=torch.bfloat16) * 3.2)(D, Hq * Dh) * (D ** -0.5)),
            "wo": _w((lambda *s: torch.randn(*s, dtype=torch.bfloat16) * 0.8)(Hq * Dh, D) * ((Hq * Dh) ** -0.5)),
        }
    _B_in = _B_setup()

    return {
        "A_x": _A_in["x"],
        "A_k_cache": _A_in["k_cache"],
        "A_v_cache": _A_in["v_cache"],
        "A_wq": _A_in["wq"],
        "A_wo": _A_in["wo"],
        "B_x": _B_in["x"],
        "B_k_cache": _B_in["k_cache"],
        "B_v_cache": _B_in["v_cache"],
        "B_wq": _B_in["wq"],
        "B_wo": _B_in["wo"],
    }

def reference(A_x, A_k_cache, A_v_cache, A_wq, A_wo, B_x, B_k_cache, B_v_cache, B_wq, B_wo):
    def _A_ref(x, k_cache, v_cache, wq, wo):
        B, Sq, D = x.shape
        Hq, Dh = 32, 128
        Hkv, Sk = k_cache.shape[1], k_cache.shape[2]
        W = min(4096, max(256, Sk // 4))
        rep = Hq // Hkv
        q = (lambda x, *d: x.permute(*d))((x @ wq).reshape(B, Sq, Hq, Dh), 0, 2, 1, 3)
        k = (lambda x, n, axis: torch.repeat_interleave(x, n, dim=axis))(k_cache[:, :, Sk - W:, :], rep, axis=1)
        v = (lambda x, n, axis: torch.repeat_interleave(x, n, dim=axis))(v_cache[:, :, Sk - W:, :], rep, axis=1)
        scores = torch.einsum("bhqd,bhkd->bhqk", q, k) * (Dh ** -0.5)
        p = _softmax(scores, axis=-1)
        o = torch.einsum("bhqk,bhkd->bhqd", p, v)
        return (lambda x, *d: x.permute(*d))(o, 0, 2, 1, 3).reshape(B, Sq, Hq * Dh) @ wo

    def _B_ref(x, k_cache, v_cache, wq, wo):
        B, Sq, D = x.shape
        Hq, Dh = 32, 128
        Hkv = k_cache.shape[1]
        rep = Hq // Hkv
        q = (lambda x, *d: x.permute(*d))((x @ wq).reshape(B, Sq, Hq, Dh), 0, 2, 1, 3)
        k = (lambda x, n, axis: torch.repeat_interleave(x, n, dim=axis))(k_cache, rep, axis=1)
        v = (lambda x, n, axis: torch.repeat_interleave(x, n, dim=axis))(v_cache, rep, axis=1)
        scores = torch.einsum("bhqd,bhkd->bhqk", q, k) * (Dh ** -0.5)
        p = _softmax(scores, axis=-1)
        o = torch.einsum("bhqk,bhkd->bhqd", p, v)
        return (lambda x, *d: x.permute(*d))(o, 0, 2, 1, 3).reshape(B, Sq, Hq * Dh) @ wo

    a = _A_ref(A_x, A_k_cache, A_v_cache, A_wq, A_wo)
    b = _B_ref(B_x, B_k_cache, B_v_cache, B_wq, B_wo)
    return torch.concatenate([a, b], axis=-1)
```

```python
import sys
NAME = "concat_heads__sliding_block_cached__gqa_block_cached__decode"
NT = " nt"

class K:
    def __init__(self): self.L = []
    def __call__(self, s): self.L.append("    " + s)
    def label(self, s): self.L.append(s + ":")
    def c(self, s): self.L.append("    ; " + s)
    def text(self): return "\n".join(self.L) + "\n"

def kd(name, vgpr, accum, sgpr=96):
    return f""".section .rodata,"a"
.p2align 6
.amdhsa_kernel {name}
  .amdhsa_next_free_vgpr {vgpr}
  .amdhsa_next_free_sgpr {sgpr}
  .amdhsa_accum_offset {accum}
  .amdhsa_group_segment_fixed_size 0
  .amdhsa_kernarg_size 104
  .amdhsa_user_sgpr_count 2
  .amdhsa_user_sgpr_kernarg_segment_ptr 1
  .amdhsa_system_sgpr_workgroup_id_x 1
.end_amdhsa_kernel
"""
def entry(name):
    return f""".text
.globl {name}
.p2align 8
.type {name},@function
{name}:
"""

WS_QP = 0
WS_PO = 0x40000
WS_ML = 0xC0000
WS_OP = 0xC8000
WS_SIZE = 0x108000

SEL_LO = 0x05040100
SEL_HI = 0x07060302
SCALE_LOG2E = (128 ** -0.5) * 1.4426950408889634
import struct
def f32bits(x): return struct.unpack("<I", struct.pack("<f", x))[0]

def srd(k, d, lo, hi, size):
    k(f"s_mov_b32 s{d}, s{lo}")
    k(f"s_and_b32 s{d+1}, s{hi}, 0xffff")
    k(f"s_mov_b32 s{d+2}, {size}")
    k(f"s_mov_b32 s{d+3}, 0x20000")

def lane_ids(k):
    k("v_and_b32 v1, 63, v0")
    k("v_lshrrev_b32 v2, 6, v0")
    k("v_lshrrev_b32 v3, 4, v1")
    k("v_readfirstlane_b32 s12, v2")
    k("v_and_b32 v2, 15, v1")

def tile_gemv(k, wreg, xreg, acc, tmp):
    for m in range(8):
        t = tmp + 2 * (m & 1)
        sel = "s40" if (m & 1) == 0 else "s41"
        q = m >> 1
        k(f"v_perm_b32 v{t}, v{wreg+4+q}, v{wreg+q}, {sel}")
        k(f"v_perm_b32 v{t+1}, v{wreg+12+q}, v{wreg+8+q}, {sel}")
        k("s_nop 1")
        k(f"v_mfma_f32_16x16x16_bf16 v[{acc+4*m}:{acc+4*m+3}], v[{xreg}:{xreg+1}], v[{t}:{t+1}], 0")

def k1():
    name = "qproj_kernel"
    k = K()
    k("s_cmp_ge_u32 s2, 256"); k("s_cbranch_scc1 L1_end")
    k("s_lshr_b32 s3, s2, 7")
    k("s_mul_i32 s4, s3, 40")
    k("s_add_u32 s6, s0, s4"); k("s_addc_u32 s7, s1, 0")
    k("s_load_dwordx2 s[8:9], s[6:7], 0")
    k("s_load_dwordx2 s[10:11], s[6:7], 24")
    k("s_load_dwordx2 s[14:15], s[0:1], 96")
    lane_ids(k)
    k("s_lshr_b32 s16, s2, 2"); k("s_and_b32 s16, s16, 31")
    k("s_and_b32 s17, s2, 3")
    k("s_lshl_b32 s18, s17, 7"); k("s_lshl_b32 s19, s12, 4"); k("s_add_u32 s18, s18, s19")
    k("s_mov_b32 s40, 0x%x" % SEL_LO); k("s_mov_b32 s41, 0x%x" % SEL_HI)
    k("v_lshlrev_b32 v4, 15, v3"); k("v_lshlrev_b32 v5, 4, v2"); k("v_add_u32 v4, v4, v5")
    k("v_and_b32 v5, 1, v2"); k("v_lshlrev_b32 v5, 10, v5")
    k("v_lshlrev_b32 v6, 3, v3"); k("v_add_u32 v5, v5, v6")
    k("s_lshl_b32 s20, s18, 1")
    k("s_lshl_b32 s21, s18, 13"); k("s_lshl_b32 s22, s16, 8"); k("s_add_u32 s21, s21, s22")
    k("s_waitcnt lgkmcnt(0)")
    srd(k, 24, 8, 9, 2048)
    srd(k, 28, 10, 11, 4 << 20)
    srd(k, 32, 14, 15, WS_SIZE)
    k("buffer_load_dwordx2 v[20:21], v5, s[24:27], s20 offen")
    for e in range(4):
        k(f"buffer_load_dwordx4 v[{48+4*e}:{51+4*e}], v4, s[28:31], s21 offen{NT}")
        if e < 3: k("s_add_u32 s21, s21, 8192")
    k("s_waitcnt vmcnt(0)")
    tile_gemv(k, 48, 20, 64, 32)
    k("s_lshl_b32 s22, s12, 10")
    k("v_lshlrev_b32 v6, 5, v2"); k("v_add_u32 v6, s22, v6")
    k("s_nop 7")
    k("s_mov_b64 exec, 0xffff")
    for m in range(8):
        k(f"ds_write2_b32 v6, v{64+4*m}, v{65+4*m} offset0:{m} offset1:{128+m}")
    k("s_mov_b64 exec, -1")
    k("s_waitcnt lgkmcnt(0)"); k("s_barrier")
    k("s_cmp_ge_u32 s12, 4"); k("s_cbranch_scc1 L1_end")
    k("v_lshlrev_b32 v6, 2, v0")
    for w in range(8):
        k(f"ds_read_b32 v{8+w}, v6 offset:{w*1024}")
    k("s_waitcnt lgkmcnt(0)")
    k("v_add_f32 v8, v8, v9"); k("v_add_f32 v10, v10, v11"); k("v_add_f32 v12, v12, v13"); k("v_add_f32 v14, v14, v15")
    k("v_add_f32 v8, v8, v10"); k("v_add_f32 v12, v12, v14"); k("v_add_f32 v8, v8, v12")
    k("s_lshl_b32 s22, s2, 10"); k(f"s_add_u32 s22, s22, {WS_QP}")
    k("buffer_store_dword v8, v6, s[32:35], s22 offen")
    k("s_waitcnt vmcnt(0)")
    k.label("L1_end"); k("s_endpgm")
    return name, k.text(), kd(name, 96, 96)

def k2():
    name = "attn_kernel"
    k = K()
    k("s_cmp_ge_u32 s2, 240"); k("s_cbranch_scc1 L2_end")
    k("s_mul_hi_u32 s3, s2, 0x55555556")
    k("s_mul_i32 s4, s3, 3"); k("s_sub_u32 s4, s2, s4")
    k("s_cmp_ge_u32 s3, 16")
    k("s_cselect_b32 s5, 1, 0")
    k("s_sub_u32 s6, s3, 16")
    k("s_lshr_b32 s7, s6, 2")
    k("s_and_b32 s6, s6, 3")
    k("s_lshl_b32 s6, s6, 11")
    k("s_cmp_ge_u32 s3, 16")
    k("s_cselect_b32 s7, s7, s3")
    k("s_cselect_b32 s6, s6, 6144")
    k("s_mul_i32 s8, s5, 40")
    k("s_add_u32 s8, s0, s8"); k("s_addc_u32 s9, s1, 0")
    k("s_load_dwordx4 s[16:19], s[8:9], 8")
    k("s_load_dwordx2 s[14:15], s[0:1], 96")
    lane_ids(k)
    k("s_mul_i32 s10, s4, 21"); k("s_cmp_gt_u32 s4, 0"); k("s_addc_u32 s10, s10, 0")
    k("s_mul_i32 s11, s12, 3"); k("s_add_u32 s10, s10, s11")
    k("s_cmp_eq_u32 s4, 0"); k("s_cselect_b32 s11, 1, 0")
    k("s_cmp_lt_u32 s12, 7"); k("s_cselect_b32 s11, 3, s11")
    k("s_lshl_b32 s13, s7, 21")
    k("s_lshl_b32 s10, s10, 5"); k("s_add_u32 s10, s10, s6"); k("s_lshl_b32 s10, s10, 8"); k("s_add_u32 s13, s13, s10")
    k("s_mov_b32 s40, 0x%x" % SEL_LO); k("s_mov_b32 s41, 0x%x" % SEL_HI)
    k("s_mov_b32 s42, 0x%x" % f32bits(SCALE_LOG2E))
    k("v_and_b32 v4, 3, v2"); k("v_lshlrev_b32 v4, 2, v4"); k("v_lshrrev_b32 v5, 2, v2"); k("v_add_u32 v4, v4, v5")
    k("v_lshlrev_b32 v4, 8, v4"); k("v_lshlrev_b32 v5, 4, v3"); k("v_add_u32 v4, v4, v5")
    k("v_lshlrev_b32 v5, 4, v1")
    k("s_waitcnt lgkmcnt(0)")
    srd(k, 24, 16, 17, 32 << 20)
    srd(k, 28, 18, 19, 32 << 20)
    srd(k, 32, 14, 15, WS_SIZE)
    k("s_and_b32 s20, s7, 7"); k("s_lshr_b32 s21, s7, 3")
    k("s_lshl_b32 s22, s5, 5"); k("s_lshl_b32 s20, s20, 2"); k("s_add_u32 s22, s22, s20")
    k("s_lshl_b32 s22, s22, 12")
    k("s_lshl_b32 s21, s21, 9"); k("s_add_u32 s22, s22, s21")
    k(f"s_add_u32 s22, s22, {WS_QP}")
    k("v_lshrrev_b32 v6, 7, v0"); k("v_lshlrev_b32 v6, 12, v6")
    k("v_and_b32 v7, 127, v0"); k("v_lshlrev_b32 v7, 2, v7"); k("v_add_u32 v6, v6, v7")
    for kq in range(4):
        k(f"buffer_load_dword v{8+kq}, v6, s[32:35], s22 offen offset:{kq*1024}")
    def kload(u):
        k(f"s_add_u32 s20, s13, {u*8192}")
        for t in range(2):
            if t == 1: k("s_add_u32 s20, s20, 4096")
            for j in range(4):
                a = (u * 8 + t * 4 + j) * 4
                k(f"buffer_load_dwordx4 a[{a}:{a+3}], v4, s[24:27], s20 offen offset:{j*64}{NT}")
    def vload(u):
        k(f"s_add_u32 s20, s13, {u*8192}")
        for i in range(8):
            if i == 4: k("s_add_u32 s20, s20, 4096")
            r = 64 + (u * 8 + i) * 4
            k(f"buffer_load_dwordx4 v[{r}:{r+3}], v5, s[28:31], s20 offen offset:{(i&3)*1024}{NT}")
    k("s_cmp_eq_u32 s11, 0"); k("s_cbranch_scc1 L2_noload")
    kload(0)
    k("s_cmp_eq_u32 s11, 1"); k("s_cbranch_scc1 L2_l1")
    kload(1); kload(2)
    vload(0); vload(1); vload(2)
    k("s_waitcnt vmcnt(48)")
    k("s_branch L2_q")
    k.label("L2_l1")
    vload(0)
    k("s_waitcnt vmcnt(16)")
    k("s_branch L2_q")
    k.label("L2_noload")
    k("s_waitcnt vmcnt(0)")
    k.label("L2_q")
    k("v_add_f32 v8, v8, v9"); k("v_add_f32 v10, v10, v11"); k("v_add_f32 v8, v8, v10")
    k("v_cvt_pk_bf16_f32 v8, v8, v8")
    k("v_lshlrev_b32 v7, 1, v0")
    k("ds_write_b16 v7, v8")
    k("s_waitcnt lgkmcnt(0)"); k("s_barrier")
    k("v_and_b32 v6, 3, v2"); k("v_lshlrev_b32 v6, 8, v6"); k("v_lshlrev_b32 v7, 4, v3"); k("v_add_u32 v6, v6, v7")
    for j in range(4):
        k(f"ds_read_b128 v[{32+4*j}:{35+4*j}], v6 offset:{j*64}")
    for i in range(24): k(f"v_mov_b32 v{8+i}, 0xff800000")
    k("s_waitcnt lgkmcnt(0)")
    def qk(u, after):
        for t in range(2):
            s = 8 + u * 8 + t * 4
            k(f"s_waitcnt vmcnt({after + (4 if t == 0 else 0)})")
            for j in range(4):
                a = (u * 8 + t * 4 + j) * 4
                c = "0" if j == 0 else f"v[{s}:{s+3}]"
                k(f"v_mfma_f32_16x16x32_bf16 v[{s}:{s+3}], a[{a}:{a+3}], v[{32+4*j}:{35+4*j}], {c}")
    k("s_cmp_eq_u32 s11, 0"); k("s_cbranch_scc1 L2_qkdone")
    k("s_cmp_eq_u32 s11, 1"); k("s_cbranch_scc1 L2_qk1")
    qk(0, 40); qk(1, 32); qk(2, 24)
    k("s_branch L2_qkdone")
    k.label("L2_qk1")
    qk(0, 8)
    k.label("L2_qkdone")
    k("s_nop 7"); k("s_nop 1")
    k("v_max3_f32 v20+0, v8, v9, v10".replace("v20+0", "v48"))
    for i in range(3, 23, 2):
        k(f"v_max3_f32 v48, v48, v{8+i}, v{9+i}")
    k("v_max_f32 v48, v48, v31")
    k("v_mov_b32 v49, v48"); k("s_nop 1"); k("v_permlane32_swap_b32 v48, v49"); k("v_max_f32 v48, v48, v49")
    k("v_mov_b32 v49, v48"); k("s_nop 1"); k("v_permlane16_swap_b32 v48, v49"); k("v_max_f32 v48, v48, v49")
    k("s_lshl_b32 s20, s12, 4"); k("v_lshlrev_b32 v6, 2, v1"); k("v_add_u32 v6, s20, v6")
    k("s_mov_b64 exec, 0xf")
    k("ds_write_b32 v6, v48 offset:1024")
    k("s_mov_b64 exec, -1")
    k("s_waitcnt lgkmcnt(0)"); k("s_barrier")
    k("v_and_b32 v6, 3, v2"); k("v_lshlrev_b32 v6, 2, v6")
    for w in range(8):
        k(f"ds_read_b32 v{48+w}, v6 offset:{1024 + w*16}")
    k("s_waitcnt lgkmcnt(0)")
    k("v_max3_f32 v48, v48, v49, v50"); k("v_max3_f32 v51, v51, v52, v53"); k("v_max3_f32 v48, v48, v54, v55"); k("v_max_f32 v48, v48, v51")
    k("v_mul_f32 v49, s42, v48")
    for i in range(24):
        k(f"v_fma_f32 v{8+i}, v{8+i}, s42, -v49")
    for i in range(24):
        k(f"v_exp_f32 v{8+i}, v{8+i}")
    k("s_nop 0")
    k("v_add_f32 v50, v8, v9")
    for i in range(2, 24):
        k(f"v_add_f32 v50, v50, v{8+i}")
    k("v_mov_b32 v51, v50"); k("s_nop 1"); k("v_permlane32_swap_b32 v50, v51"); k("v_add_f32 v50, v50, v51")
    k("v_mov_b32 v51, v50"); k("s_nop 1"); k("v_permlane16_swap_b32 v50, v51"); k("v_add_f32 v50, v50, v51")
    for w in range(12):
        k(f"v_cvt_pk_bf16_f32 v{8+w}, v{8+2*w}, v{9+2*w}")
    k("s_lshl_b32 s20, s12, 4"); k("v_lshlrev_b32 v6, 2, v1"); k("v_add_u32 v6, s20, v6")
    k("s_mov_b64 exec, 0xf")
    k("ds_write_b32 v6, v50 offset:1280")
    k("s_mov_b64 exec, -1")
    for i in range(32): k(f"v_accvgpr_write_b32 a{i}, 0")
    def pv(u, after):
        k(f"s_waitcnt vmcnt({after})")
        base = 64 + u * 32
        for m in range(8):
            t = 32 + 4 * (m & 3)
            sel = "s40" if (m & 1) == 0 else "s41"
            q = m >> 1
            for w in range(4):
                k(f"v_perm_b32 v{t+w}, v{base + (2*w+1)*4 + q}, v{base + (2*w)*4 + q}, {sel}")
            k("s_nop 1")
            k(f"v_mfma_f32_16x16x32_bf16 a[{4*m}:{4*m+3}], v[{8+4*u}:{11+4*u}], v[{t}:{t+3}], a[{4*m}:{4*m+3}]")
    k("s_cmp_eq_u32 s11, 0"); k("s_cbranch_scc1 L2_pvdone")
    k("s_cmp_eq_u32 s11, 1"); k("s_cbranch_scc1 L2_pv1")
    pv(0, 16); pv(1, 8); pv(2, 0)
    k("s_branch L2_pvdone")
    k.label("L2_pv1")
    pv(0, 0)
    k.label("L2_pvdone")
    k("s_lshl_b32 s20, s12, 11"); k("v_lshlrev_b32 v6, 7, v2"); k("v_add_u32 v6, s20, v6")
    k("s_nop 7")
    k("s_mov_b64 exec, 0xffff")
    for m in range(8):
        k(f"ds_write_b128 v6, a[{4*m}:{4*m+3}] offset:{2048 + m*16}")
    k("s_mov_b64 exec, -1")
    k("s_waitcnt lgkmcnt(0)"); k("s_barrier")
    k("v_and_b32 v6, 127, v0"); k("v_lshlrev_b32 v6, 4, v6"); k("v_lshrrev_b32 v7, 7, v0"); k("v_lshlrev_b32 v7, 2, v7"); k("v_add_u32 v6, v6, v7")
    for w in range(8):
        k(f"ds_read_b32 v{8+w}, v6 offset:{2048 + w*2048}")
    k("v_and_b32 v7, 3, v0"); k("v_lshlrev_b32 v7, 2, v7")
    for w in range(8):
        k(f"ds_read_b32 v{16+w}, v7 offset:{1280 + w*16}")
    k("s_waitcnt lgkmcnt(0)")
    k("v_add_f32 v8, v8, v9"); k("v_add_f32 v10, v10, v11"); k("v_add_f32 v12, v12, v13"); k("v_add_f32 v14, v14, v15")
    k("v_add_f32 v8, v8, v10"); k("v_add_f32 v12, v12, v14"); k("v_add_f32 v8, v8, v12")
    k("v_add_f32 v16, v16, v17"); k("v_add_f32 v18, v18, v19"); k("v_add_f32 v20, v20, v21"); k("v_add_f32 v22, v22, v23")
    k("v_add_f32 v16, v16, v18"); k("v_add_f32 v20, v20, v22"); k("v_add_f32 v17, v16, v20")
    k("v_mov_b32 v16, v48")
    k("v_lshlrev_b32 v6, 2, v0")
    k("s_lshl_b32 s20, s2, 11"); k(f"s_add_u32 s20, s20, {WS_PO}")
    k("buffer_store_dword v8, v6, s[32:35], s20 offen")
    k("s_cmp_lg_u32 s12, 0"); k("s_cbranch_scc1 L2_done")
    k("v_lshlrev_b32 v6, 3, v1")
    k("s_lshl_b32 s20, s2, 5"); k(f"s_add_u32 s20, s20, {WS_ML}")
    k("s_mov_b64 exec, 0xf")
    k("buffer_store_dwordx2 v[16:17], v6, s[32:35], s20 offen")
    k.label("L2_done")
    k("s_waitcnt vmcnt(0)")
    k.label("L2_end"); k("s_endpgm")
    return name, k.text(), kd(name, 256, 160)

def k3():
    name = "oproj_kernel"
    k = K()
    k("s_cmp_ge_u32 s2, 256"); k("s_cbranch_scc1 L3_end")
    k("s_lshr_b32 s3, s2, 7")
    k("s_lshr_b32 s16, s2, 2"); k("s_and_b32 s16, s16, 31")
    k("s_and_b32 s17, s2, 3")
    k("s_mul_i32 s4, s3, 40")
    k("s_add_u32 s6, s0, s4"); k("s_addc_u32 s7, s1, 0")
    k("s_load_dwordx2 s[10:11], s[6:7], 32")
    k("s_load_dwordx2 s[14:15], s[0:1], 96")
    lane_ids(k)
    k("s_mov_b32 s40, 0x%x" % SEL_LO); k("s_mov_b32 s41, 0x%x" % SEL_HI)
    k("s_mov_b32 s42, 0x%x" % f32bits(SCALE_LOG2E))
    k("v_lshlrev_b32 v4, 12, v3"); k("v_lshlrev_b32 v5, 4, v2"); k("v_add_u32 v4, v4, v5")
    k("s_lshl_b32 s18, s16, 7"); k("s_lshl_b32 s19, s12, 4"); k("s_add_u32 s18, s18, s19")
    k("s_lshl_b32 s21, s18, 10"); k("s_lshl_b32 s22, s17, 8"); k("s_add_u32 s21, s21, s22")
    k("s_waitcnt lgkmcnt(0)")
    srd(k, 28, 10, 11, 4 << 20)
    srd(k, 32, 14, 15, WS_SIZE)
    for e in range(4):
        k(f"buffer_load_dwordx4 v[{48+4*e}:{51+4*e}], v4, s[28:31], s21 offen offset:{e*1024}{NT}")
    k("s_cmp_eq_u32 s3, 0"); k("s_cselect_b32 s23, 3, 12"); k("s_cselect_b32 s24, 0, 48")
    k("s_lshr_b32 s25, s16, 2")
    k("s_and_b32 s26, s16, 3")
    k("v_lshrrev_b32 v6, 5, v1"); k("v_and_b32 v7, 31, v1")
    k("v_lshlrev_b32 v8, 3, v6"); k("v_add_u32 v8, s25, v8")
    k("v_mul_lo_u32 v8, v8, s23"); k("v_add_u32 v8, s24, v8")
    k("v_add_u32 v9, v8, v7")
    k("v_lshlrev_b32 v9, 5, v9"); k("s_lshl_b32 s27, s26, 3"); k("v_add_u32 v9, s27, v9")
    k("v_cmp_gt_u32 vcc, s23, v7")
    k("v_mov_b32 v10, 0xff800000"); k("v_mov_b32 v11, 0")
    k("s_and_saveexec_b64 s[44:45], vcc")
    k(f"s_mov_b32 s28, {WS_ML}")
    k("buffer_load_dwordx2 v[10:11], v9, s[32:35], s28 offen")
    k("s_mov_b64 exec, s[44:45]")
    k("v_lshlrev_b32 v12, 11, v8"); k("v_lshlrev_b32 v13, 4, v7"); k("v_add_u32 v12, v12, v13")
    k("s_lshl_b32 s29, s26, 9"); k(f"s_add_u32 s29, s29, {WS_PO}")
    k("s_lshl_b32 s30, s12, 11"); k("s_add_u32 s29, s29, s30")
    for i in range(8): k(f"v_mov_b32 v{16+i}, 0")
    k("s_cmp_ge_u32 s12, s23"); k("s_cbranch_scc1 L3_nopo")
    k("buffer_load_dwordx4 v[16:19], v12, s[32:35], s29 offen")
    k("s_add_u32 s30, s12, 8"); k("s_cmp_ge_u32 s30, s23"); k("s_cbranch_scc1 L3_nopo")
    k("s_add_u32 s29, s29, 16384")
    k("buffer_load_dwordx4 v[20:23], v12, s[32:35], s29 offen")
    k.label("L3_nopo")
    k("s_waitcnt vmcnt(0)")
    k("v_mov_b32 v24, v10")
    for sh in (1, 2, 4, 8):
        k("s_nop 1")
        k(f"v_max_f32_dpp v24, v24, v24 row_ror:{sh} row_mask:0xf bank_mask:0xf")
    k("v_mov_b32 v25, v24"); k("s_nop 1"); k("v_permlane16_swap_b32 v24, v25"); k("v_max_f32 v24, v24, v25")
    k("v_sub_f32 v26, v10, v24"); k("v_mul_f32 v26, s42, v26"); k("v_exp_f32 v26, v26")
    k("s_nop 0")
    k("v_mul_f32 v27, v26, v11")
    for sh in (1, 2, 4, 8):
        k("s_nop 1")
        k(f"v_add_f32_dpp v27, v27, v27 row_ror:{sh} row_mask:0xf bank_mask:0xf")
    k("v_mov_b32 v25, v27"); k("s_nop 1"); k("v_permlane16_swap_b32 v27, v25"); k("v_add_f32 v27, v27, v25")
    k("v_rcp_f32 v27, v27"); k("s_nop 0"); k("v_mul_f32 v26, v26, v27")
    k("v_and_b32 v28, 32, v1"); k("v_add_u32 v28, s12, v28"); k("v_lshlrev_b32 v28, 2, v28")
    k("ds_bpermute_b32 v29, v28, v26")
    k("v_add_u32 v28, 32, v28")
    k("ds_bpermute_b32 v30, v28, v26")
    k("s_waitcnt lgkmcnt(0)")
    for i in range(4):
        k(f"v_mul_f32 v{16+i}, v{16+i}, v29")
        k(f"v_fma_f32 v{16+i}, v{20+i}, v30, v{16+i}")
    k("s_lshl_b32 s22, s12, 10"); k("v_lshlrev_b32 v6, 4, v1"); k("v_add_u32 v6, s22, v6")
    k("ds_write_b128 v6, v[16:19]")
    k("s_waitcnt lgkmcnt(0)"); k("s_barrier")
    k("s_cmp_ge_u32 s12, 4"); k("s_cbranch_scc1 L3_skip")
    k("v_lshlrev_b32 v6, 2, v0")
    for w in range(8):
        k(f"ds_read_b32 v{8+w}, v6 offset:{w*1024}")
    k("s_waitcnt lgkmcnt(0)")
    k("v_add_f32 v8, v8, v9"); k("v_add_f32 v10, v10, v11"); k("v_add_f32 v12, v12, v13"); k("v_add_f32 v14, v14, v15")
    k("v_add_f32 v8, v8, v10"); k("v_add_f32 v12, v12, v14"); k("v_add_f32 v8, v8, v12")
    k("v_cvt_pk_bf16_f32 v8, v8, v8")
    k("v_lshlrev_b32 v6, 1, v0")
    k("ds_write_b16 v6, v8 offset:8192")
    k("s_waitcnt lgkmcnt(0)")
    k.label("L3_skip")
    k("s_barrier")
    k("v_and_b32 v6, 1, v2"); k("v_lshlrev_b32 v6, 8, v6"); k("v_lshlrev_b32 v7, 3, v3"); k("v_add_u32 v6, v6, v7")
    k("s_lshl_b32 s22, s12, 5"); k("v_add_u32 v6, s22, v6")
    k("ds_read_b64 v[20:21], v6 offset:8192")
    k("s_waitcnt lgkmcnt(0)")
    tile_gemv(k, 48, 20, 64, 32)
    k("s_lshl_b32 s22, s12, 10")
    k("v_lshlrev_b32 v6, 5, v2"); k("v_add_u32 v6, s22, v6")
    k("s_nop 7")
    k("s_barrier")
    k("s_mov_b64 exec, 0xffff")
    for m in range(8):
        k(f"ds_write2_b32 v6, v{64+4*m}, v{65+4*m} offset0:{m} offset1:{128+m}")
    k("s_mov_b64 exec, -1")
    k("s_waitcnt lgkmcnt(0)"); k("s_barrier")
    k("s_cmp_ge_u32 s12, 4"); k("s_cbranch_scc1 L3_end")
    k("v_lshlrev_b32 v6, 2, v0")
    for w in range(8):
        k(f"ds_read_b32 v{8+w}, v6 offset:{w*1024}")
    k("s_waitcnt lgkmcnt(0)")
    k("v_add_f32 v8, v8, v9"); k("v_add_f32 v10, v10, v11"); k("v_add_f32 v12, v12, v13"); k("v_add_f32 v14, v14, v15")
    k("v_add_f32 v8, v8, v10"); k("v_add_f32 v12, v12, v14"); k("v_add_f32 v8, v8, v12")
    k("s_lshl_b32 s22, s3, 2"); k("s_add_u32 s22, s22, s17"); k("s_lshl_b32 s22, s22, 5"); k("s_add_u32 s22, s22, s16")
    k("s_lshl_b32 s22, s22, 10"); k(f"s_add_u32 s22, s22, {WS_OP}")
    k("buffer_store_dword v8, v6, s[32:35], s22 offen")
    k("s_waitcnt vmcnt(0)")
    k.label("L3_end"); k("s_endpgm")
    return name, k.text(), kd(name, 96, 96)

def k4():
    name = "final_kernel"
    k = K()
    k("s_cmp_ge_u32 s2, 8"); k("s_cbranch_scc1 L4_end")
    k("s_load_dwordx2 s[14:15], s[0:1], 96")
    k("s_load_dwordx2 s[10:11], s[0:1], 80")
    k("v_lshlrev_b32 v6, 2, v0")
    k("s_lshl_b32 s22, s2, 15"); k(f"s_add_u32 s22, s22, {WS_OP}")
    k("s_waitcnt lgkmcnt(0)")
    srd(k, 32, 14, 15, WS_SIZE)
    srd(k, 28, 10, 11, 4096)
    for h in range(32):
        k(f"buffer_load_dword v{8+h}, v6, s[32:35], s22 offen offset:{(h&3)*1024}")
        if (h & 3) == 3: k("s_add_u32 s22, s22, 4096")
    k("s_waitcnt vmcnt(0)")
    n = 32
    st = 1
    while st < 32:
        for i in range(0, 32, 2 * st):
            k(f"v_add_f32 v{8+i}, v{8+i}, v{8+i+st}")
        st *= 2
    k("v_cvt_pk_bf16_f32 v8, v8, v8")
    k("v_lshrrev_b32 v6, 7, v0"); k("v_lshlrev_b32 v6, 11, v6"); k("v_and_b32 v7, 127, v0"); k("v_lshlrev_b32 v7, 1, v7"); k("v_add_u32 v6, v6, v7")
    k("s_lshl_b32 s22, s2, 8")
    k("buffer_store_short v8, v6, s[28:31], s22 offen")
    k("s_waitcnt vmcnt(0)")
    k.label("L4_end"); k("s_endpgm")
    return name, k.text(), kd(name, 48, 48)

def build():
    ks = [(k1(), 256, 512, 8192), (k2(), 240, 512, 2048 + 8 * 2048), (k3(), 256, 512, 8192 + 512), (k4(), 8, 256, 0)]
    out = []
    for (name, _, _), g, b, lds in ks:
        out.append(f"; @launch kernel={name} grid=({g},1,1) block=({b},1,1) lds={lds}")
    out.append('.amdgcn_target "amdgcn-amd-amdhsa--gfx950"')
    for (name, body, d), g, b, lds in ks:
        out.append(entry(name) + body)
    for (name, body, d), g, b, lds in ks:
        out.append(d)
    return "\n".join(out)

if __name__ == "__main__":
    if len(sys.argv) > 2 and sys.argv[2] == "nont": NT = ""
    open(sys.argv[1], "w").write(build())
```

```python
import sys, struct
NAME = "concat_heads__sliding_block_cached__gqa_block_cached__decode"

class K:
    def __init__(self): self.L = []
    def __call__(self, s): self.L.append("    " + s)
    def label(self, s): self.L.append(s + ":")
    def c(self, s): self.L.append("    ; " + s)
    def text(self): return "\n".join(self.L) + "\n"

def f32bits(x): return struct.unpack("<I", struct.pack("<f", x))[0]

WS_EP = 0x0
WS_QP = 0x2000
WS_PO = 0x22000
WS_OP = 0x9A000
WS_LOC = 0x120000
WS_ST = 0x1C0000
WS_SIZE = 0x1E0000
QMASK = 3
TMASK = 15

L_QRED = 0x0000
L_QLDS = 0x2000
L_MX = 0x2400
L_LS = 0x2480
L_OLDS = 0x2500
L_ORED = 0x2800
L_WX = 0x6800
WX_STRIDE = 4128
LDS_SIZE = L_WX + 8 * WX_STRIDE

SEL_LO = 0x05040100
SEL_HI = 0x07060302
TAGX = 0x5bd1e995
SCALE_LOG2E = (128 ** -0.5) * 1.4426950408889634
SPIN_MAX = 100015
PUB_WAVE = 3

class Opt:
    nt_kv = " nt"
    nt_w = " nt"
    stamps = False
    early_b = True
OPT = Opt()

S_WAVE = 12; S_KVOFF = 13
SRD_K = 24; SRD_V = 28; SRD_WS = 32; SRD_WQ = 36; SRD_WO = 48; SRD_X = 52; SRD_OUT = 56
S_SELLO = 40; S_SELHI = 41; S_SCALE = 42
S_PBR = 60; S_H = 61; S_KQ = 62; S_PAIR = 63; S_ABR = 64; S_SPIN = 65; S_THIRD = 66
S_AW = 11
S_IP = 43; S_X = 8
S_TP1 = 16; S_TP2 = 17
S_TA1 = 18; S_TA2 = 19
S_STAMP = 70
SRW = f"s[{SRD_WS}:{SRD_WS+3}]"

def srd(k, d, lo, hi, size):
    k(f"s_mov_b32 s{d}, s{lo}")
    k(f"s_and_b32 s{d+1}, s{hi}, 0xffff")
    k(f"s_mov_b32 s{d+2}, {size}")
    k(f"s_mov_b32 s{d+3}, 0x20000")

class Gen:
    def __init__(self):
        self.k = K()
    def stamp(self, idx):
        if OPT.stamps:
            self.k(f"s_memtime s[{S_STAMP+2*idx}:{S_STAMP+2*idx+1}]")

    def prologue(self):
        k = self.k
        k("s_cmp_ge_u32 s2, 256"); k("s_cbranch_scc1 L_end")
        self.stamp(0)
        k(f"s_lshr_b32 s3, s2, 3"); k(f"s_lshr_b32 s{S_PBR}, s3, 4"); k(f"s_sub_u32 s{S_IP}, s3, s{S_PBR}")
        k(f"s_cmp_ge_u32 s{S_IP}, 6"); k(f"s_cselect_b32 s{S_ABR}, 1, 0")
        k(f"s_mul_i32 s4, s{S_PBR}, 40"); k("s_add_u32 s6, s0, s4"); k("s_addc_u32 s7, s1, 0")
        k(f"s_mul_i32 s4, s{S_ABR}, 40"); k("s_add_u32 s8, s0, s4"); k("s_addc_u32 s9, s1, 0")
        k("s_load_dwordx2 s[14:15], s[0:1], 96")
        k("s_load_dwordx2 s[20:21], s[6:7], 0")
        k("s_load_dwordx4 s[44:47], s[6:7], 24")
        k("s_load_dwordx4 s[16:19], s[8:9], 8")
        k("s_load_dwordx2 s[22:23], s[0:1], 80")
        k("v_and_b32 v1, 63, v0")
        k("v_lshrrev_b32 v2, 6, v0")
        k("v_lshrrev_b32 v3, 4, v1")
        k(f"v_readfirstlane_b32 s{S_WAVE}, v2")
        k("v_and_b32 v2, 15, v1")
        k(f"s_and_b32 s{S_X}, s2, 7")
        k(f"s_lshr_b32 s{S_H}, s2, 5"); k(f"s_and_b32 s{S_H}, s{S_H}, 3"); k(f"s_lshl_b32 s4, s{S_X}, 2"); k(f"s_add_u32 s{S_H}, s{S_H}, s4")
        k(f"s_lshr_b32 s{S_KQ}, s2, 3"); k(f"s_and_b32 s{S_KQ}, s{S_KQ}, 3")
        k(f"s_mul_i32 s{S_AW}, s{S_X}, 30"); k(f"s_add_u32 s{S_AW}, s{S_AW}, s{S_IP}")
        k(f"s_mov_b32 s{S_SELLO}, 0x{SEL_LO:x}"); k(f"s_mov_b32 s{S_SELHI}, 0x{SEL_HI:x}")
        k(f"s_mov_b32 s{S_SCALE}, 0x{f32bits(SCALE_LOG2E):x}")
        k(f"s_mul_hi_u32 s3, s{S_IP}, 0x55555556")
        k(f"s_mul_i32 s4, s3, 3"); k(f"s_sub_u32 s{S_THIRD}, s{S_IP}, s4")
        k("s_sub_u32 s5, s3, 2"); k("s_lshr_b32 s10, s5, 2"); k("s_and_b32 s5, s5, 3"); k("s_lshl_b32 s5, s5, 11")
        k("s_cmp_ge_u32 s3, 2")
        k(f"s_cselect_b32 s10, s10, s3"); k("s_cselect_b32 s5, s5, 6144")
        k(f"s_lshl_b32 s10, s10, 3"); k(f"s_add_u32 s{S_PAIR}, s10, s{S_X}")
        k(f"s_mul_i32 s10, s{S_THIRD}, 21"); k(f"s_cmp_gt_u32 s{S_THIRD}, 0"); k("s_addc_u32 s10, s10, 0")
        k(f"s_mul_i32 s4, s{S_WAVE}, 3"); k("s_add_u32 s10, s10, s4")
        k("s_lshl_b32 s10, s10, 5"); k("s_add_u32 s10, s10, s5"); k("s_lshl_b32 s10, s10, 8")
        k(f"s_lshl_b32 s{S_KVOFF}, s{S_PAIR}, 21"); k(f"s_add_u32 s{S_KVOFF}, s{S_KVOFF}, s10")
        k("v_and_b32 v4, 3, v2"); k("v_lshlrev_b32 v4, 2, v4"); k("v_lshrrev_b32 v5, 2, v2"); k("v_add_u32 v4, v4, v5")
        k("v_lshlrev_b32 v4, 8, v4"); k("v_lshlrev_b32 v5, 4, v3"); k("v_add_u32 v4, v4, v5")
        k("v_lshlrev_b32 v5, 4, v1")
        k("v_mov_b32 v120, 0"); k("v_mov_b32 v121, 0")
        k("v_lshlrev_b32 v6, 16, v3"); k("v_lshrrev_b32 v7, 3, v2"); k("v_lshlrev_b32 v7, 15, v7"); k("v_add_u32 v6, v6, v7")
        k("v_and_b32 v7, 7, v2"); k("v_lshlrev_b32 v7, 4, v7"); k("v_add_u32 v6, v6, v7")
        k("v_lshrrev_b32 v7, 1, v2"); k("v_and_b32 v7, 1, v7"); k("v_lshlrev_b32 v7, 10, v7"); k("v_lshlrev_b32 v8, 4, v3"); k("v_add_u32 v7, v7, v8")
        k("v_and_b32 v8, 1, v2"); k("v_lshlrev_b32 v8, 3, v8"); k("v_add_u32 v7, v7, v8")
        k("s_lshr_b32 s3, s2, 3"); k("s_and_b32 s4, s3, 1"); k("s_lshl_b32 s4, s4, 8"); k(f"s_lshl_b32 s5, s{S_WAVE}, 5"); k("s_add_u32 s4, s4, s5")
        k("s_lshl_b32 s5, s4, 1")
        k("s_lshl_b32 s10, s4, 13"); k("s_lshr_b32 s3, s3, 1"); k("s_and_b32 s3, s3, 7"); k(f"s_lshl_b32 s4, s{S_X}, 3"); k("s_add_u32 s3, s3, s4")
        k("s_lshl_b32 s3, s3, 7"); k("s_add_u32 s10, s10, s3")
        k("s_lshr_b32 s3, s2, 3"); k("s_and_b32 s3, s3, 15"); k("s_cmp_eq_u32 s3, 15"); k("s_cselect_b32 s9, 1, 0")
        k("s_waitcnt lgkmcnt(0)")
        k(f"s_load_dword s68, s[14:15], {WS_EP}")
        k(f"s_load_dword s69, s[14:15], {WS_EP + 128}")
        srd(k, SRD_WS, 14, 15, WS_SIZE)
        srd(k, SRD_X, 20, 21, 2048)
        srd(k, SRD_WQ, 44, 45, 4 << 20)
        srd(k, SRD_WO, 46, 47, 4 << 20)
        srd(k, SRD_K, 16, 17, 32 << 20)
        srd(k, SRD_V, 18, 19, 32 << 20)
        srd(k, SRD_OUT, 22, 23, 4096)
        self.stamp(1)

    def nonce_ready(self):
        k = self.k
        k(f"s_cmp_eq_u32 s{S_PBR}, 0"); k(f"s_cselect_b32 s{S_TP1}, s68, s69")
        k(f"s_cmp_eq_u32 s{S_ABR}, 0"); k(f"s_cselect_b32 s{S_TA1}, s68, s69")
        k(f"s_add_u32 s{S_TP1}, s{S_TP1}, 1"); k(f"s_add_u32 s{S_TA1}, s{S_TA1}, 1")
        k(f"s_xor_b32 s{S_TP2}, s{S_TP1}, 0x{TAGX:x}"); k(f"s_xor_b32 s{S_TA2}, s{S_TA1}, 0x{TAGX:x}")

    def wq_loads(self):
        k = self.k
        k(f"buffer_load_dwordx2 v[20:21], v7, s[{SRD_X}:{SRD_X+3}], s5 offen")
        for e in range(4):
            k(f"buffer_load_dwordx4 v[{48+4*e}:{51+4*e}], v6, s[{SRD_WQ}:{SRD_WQ+3}], s10 offen{OPT.nt_w}")
            if e < 3: k("s_add_u32 s10, s10, 8192")

    def kload(self, u, tiles=(0, 1)):
        k = self.k
        for t in tiles:
            k(f"s_add_u32 s20, s{S_KVOFF}, {u*8192 + t*4096}")
            for j in range(4):
                a = (u * 8 + t * 4 + j) * 4
                k(f"buffer_load_dwordx4 a[{a}:{a+3}], v4, s[{SRD_K}:{SRD_K+3}], s20 offen offset:{j*64}{OPT.nt_kv}")

    def vload(self, u):
        k = self.k
        for i in range(8):
            if i % 4 == 0: k(f"s_add_u32 s20, s{S_KVOFF}, {u*8192 + (i//4)*4096}")
            r = 64 + (u * 8 + i) * 4
            k(f"buffer_load_dwordx4 v[{r}:{r+3}], v5, s[{SRD_V}:{SRD_V+3}], s20 offen offset:{(i&3)*1024}{OPT.nt_kv}")

    def wo_loads(self):
        k = self.k
        k("v_lshlrev_b32 v6, 12, v3"); k("v_lshlrev_b32 v7, 4, v2"); k("v_add_u32 v6, v6, v7")
        k(f"s_lshl_b32 s20, s{S_H}, 7"); k(f"s_lshl_b32 s21, s{S_WAVE}, 4"); k("s_add_u32 s20, s20, s21")
        k("s_lshl_b32 s20, s20, 10"); k(f"s_lshl_b32 s21, s{S_KQ}, 8"); k("s_add_u32 s20, s20, s21")
        for e in range(4):
            k(f"buffer_load_dwordx4 v[{48+4*e}:{51+4*e}], v6, s[{SRD_WO}:{SRD_WO+3}], s20 offen offset:{e*1024}{OPT.nt_w}")

    def qproj_compute(self):
        k = self.k
        for m in range(8):
            t = 32 + 2 * (m & 3)
            sel = f"s{S_SELLO}" if (m & 1) == 0 else f"s{S_SELHI}"
            q = m >> 1
            k(f"v_perm_b32 v{t}, v{52+q}, v{48+q}, {sel}")
            k(f"v_perm_b32 v{t+1}, v{60+q}, v{56+q}, {sel}")
            if m > 0:
                pm = m - 1; pt = 32 + 2 * (pm & 3)
                k(f"v_mfma_f32_16x16x16_bf16 v[{64+4*pm}:{67+4*pm}], v[{pt}:{pt+1}], v[20:21], 0")
        k("v_and_b32 v8, 1, v2"); k("v_lshlrev_b32 v8, 9, v8")
        k(f"v_mfma_f32_16x16x16_bf16 v[92:95], v[38:39], v[20:21], 0")
        k("v_lshrrev_b32 v9, 1, v2"); k("v_and_b32 v9, 1, v9"); k("v_lshlrev_b32 v9, 8, v9"); k("v_add_u32 v8, v8, v9")
        k("v_and_b32 v9, 1, v3"); k("v_lshlrev_b32 v9, 7, v9"); k("v_add_u32 v8, v8, v9")
        k(f"s_lshl_b32 s20, s{S_WAVE}, 10"); k("v_add_u32 v8, s20, v8")
        k("s_mov_b32 s20, 0x00050005"); k("s_mov_b32 s21, 0x000a000a")
        k("s_mov_b64 exec, s[20:21]")
        for m in range(8):
            k(f"ds_write2_b32 v8, v{64+4*m}, v{65+4*m} offset0:{m} offset1:{8+m}")
            k(f"ds_write2_b32 v8, v{66+4*m}, v{67+4*m} offset0:{16+m} offset1:{24+m}")
        k("s_mov_b64 exec, -1")
        k("s_waitcnt lgkmcnt(0)")

    def q_publish(self):
        k = self.k
        k("v_lshlrev_b32 v6, 3, v1")
        for j in range(16):
            k(f"ds_read_b64 v[{64+2*j}:{65+2*j}], v6 offset:{L_QRED + j*512}")
        k(f"v_mov_b32 v97, s{S_TP1}"); k(f"v_mov_b32 v99, s{S_TP2}")
        k(f"s_lshl_b32 s20, s{S_PBR}, 3"); k(f"s_add_u32 s20, s20, s{S_X}"); k("s_lshl_b32 s20, s20, 4")
        k("s_lshr_b32 s21, s2, 3"); k("s_and_b32 s21, s21, 15"); k("s_add_u32 s20, s20, s21")
        k(f"s_lshl_b32 s20, s20, 9"); k(f"s_add_u32 s21, s20, {WS_QP}"); k(f"s_add_u32 s20, s21, {WS_LOC}")
        k("s_mov_b32 s22, 0x55555555"); k("s_mov_b32 s23, 0x55555555")
        st = 1
        first = True
        while st < 16:
            if st == 1: k("s_waitcnt lgkmcnt(8)")
            for j in range(0, 16, 2 * st):
                if st == 1 and j == 8: k("s_waitcnt lgkmcnt(0)")
                for i in range(2):
                    k(f"v_add_f32 v{64+2*j+i}, v{64+2*j+i}, v{64+2*(j+st)+i}")
            st *= 2
        k("v_cvt_pk_bf16_f32 v96, v64, v65")
        k("s_nop 1")
        k("v_mov_b32_dpp v98, v96 quad_perm:[1,0,3,2] row_mask:0xf bank_mask:0xf")
        k("s_mov_b64 exec, s[22:23]")
        k(f"buffer_store_dwordx4 v[96:99], v6, {SRW}, s20 offen")
        k(f"buffer_store_dwordx4 v[96:99], v6, {SRW}, s21 offen sc1")
        k("s_mov_b64 exec, -1")
        k("s_nop 0")

    def q_operand(self):
        k = self.k
        k("v_and_b32 v6, 3, v2"); k("v_lshlrev_b32 v6, 8, v6"); k("v_lshlrev_b32 v7, 4, v3"); k("v_add_u32 v6, v6, v7")
        for j in range(4):
            k(f"ds_read_b128 v[{32+4*j}:{35+4*j}], v6 offset:{L_QLDS + j*64}")

    def qk(self, u, after):
        k = self.k
        for t in range(2):
            s = 8 + u * 8 + t * 4
            k(f"s_waitcnt vmcnt({after + (4 if t == 0 else 0)})")
            for j in range(4):
                a = (u * 8 + t * 4 + j) * 4
                c = "0" if j == 0 else f"v[{s}:{s+3}]"
                k(f"v_mfma_f32_16x16x32_bf16 v[{s}:{s+3}], a[{a}:{a+3}], v[{32+4*j}:{35+4*j}], {c}")

    def xlane_g(self, op, r, t):
        k = self.k
        k(f"v_mov_b32 v{t}, v{r}"); k("s_nop 1"); k(f"v_permlane32_swap_b32 v{r}, v{t}"); k(f"{op} v{r}, v{r}, v{t}")
        k(f"v_mov_b32 v{t}, v{r}"); k("s_nop 1"); k(f"v_permlane16_swap_b32 v{r}, v{t}"); k(f"{op} v{r}, v{r}, v{t}")

    def smax(self, nreg, vm, vt):
        k = self.k
        if nreg == 0:
            k(f"v_mov_b32 v{vm}, 0xff800000")
        else:
            k(f"v_max3_f32 v{vm}, v8, v9, v10")
            i = 3
            while i + 1 < nreg:
                k(f"v_max3_f32 v{vm}, v{vm}, v{8+i}, v{9+i}"); i += 2
            if i < nreg: k(f"v_max_f32 v{vm}, v{vm}, v{8+i}")
            self.xlane_g("v_max_f32", vm, vt)
        k(f"s_lshl_b32 s20, s{S_WAVE}, 4"); k(f"v_lshlrev_b32 v6, 2, v1"); k("v_add_u32 v6, s20, v6")
        k("s_mov_b64 exec, 0xf")
        k(f"ds_write_b32 v6, v{vm} offset:{L_MX}")
        k("s_mov_b64 exec, -1")
        k("s_waitcnt lgkmcnt(0)")

    def softmax(self, nreg, vm, vl, vt):
        k = self.k
        k("v_and_b32 v6, 3, v2"); k("v_lshlrev_b32 v6, 2, v6")
        for w in range(8):
            k(f"ds_read_b32 v{vt+w}, v6 offset:{L_MX + w*16}")
        k("s_waitcnt lgkmcnt(0)")
        k(f"v_max3_f32 v{vm}, v{vt}, v{vt+1}, v{vt+2}"); k(f"v_max3_f32 v{vt+3}, v{vt+3}, v{vt+4}, v{vt+5}")
        k(f"v_max3_f32 v{vm}, v{vm}, v{vt+6}, v{vt+7}"); k(f"v_max_f32 v{vm}, v{vm}, v{vt+3}")
        if nreg:
            k(f"v_mul_f32 v{vt}, s{S_SCALE}, v{vm}")
            for i in range(nreg): k(f"v_fma_f32 v{8+i}, v{8+i}, s{S_SCALE}, -v{vt}")
            for i in range(nreg): k(f"v_exp_f32 v{8+i}, v{8+i}")
            k("s_nop 0")
            k(f"v_add_f32 v{vl}, v8, v9"); k(f"v_add_f32 v{vt+1}, v10, v11")
            for i in range(4, nreg, 2):
                k(f"v_add_f32 v{vl}, v{vl}, v{8+i}"); k(f"v_add_f32 v{vt+1}, v{vt+1}, v{9+i}")
            k(f"v_add_f32 v{vl}, v{vl}, v{vt+1}")
            for w in range(nreg // 2):
                k(f"v_cvt_pk_bf16_f32 v{8+w}, v{8+2*w}, v{9+2*w}")
            self.xlane_g("v_add_f32", vl, vt + 1)
        else:
            k(f"v_mov_b32 v{vl}, 0")
        k(f"s_lshl_b32 s20, s{S_WAVE}, 4"); k(f"v_lshlrev_b32 v6, 2, v1"); k("v_add_u32 v6, s20, v6")
        k("s_mov_b64 exec, 0xf")
        k(f"ds_write_b32 v6, v{vl} offset:{L_LS}")
        k("s_mov_b64 exec, -1")

    def pv(self, u, after, first):
        k = self.k
        k(f"s_waitcnt vmcnt({after})")
        base = 64 + u * 32
        pend = None
        for m in range(8):
            t = 32 + 4 * (m & 3)
            sel = f"s{S_SELLO}" if (m & 1) == 0 else f"s{S_SELHI}"
            q = m >> 1
            for w in range(4):
                k(f"v_perm_b32 v{t+w}, v{base + (2*w+1)*4 + q}, v{base + (2*w)*4 + q}, {sel}")
            if pend is not None: k(pend)
            c = "0" if first else f"a[{4*m}:{4*m+3}]"
            pend = f"v_mfma_f32_16x16x32_bf16 a[{4*m}:{4*m+3}], v[{8+4*u}:{11+4*u}], v[{t}:{t+3}], {c}"
        k("s_nop 1")
        k(pend)

    def o_to_lds(self, zero=False):
        k = self.k
        if zero:
            for i in range(4): k(f"v_mov_b32 v{32+i}, 0")
        k("s_mov_b64 exec, 0xffff")
        for m in range(8):
            src = "v[32:35]" if zero else f"a[{4*m}:{4*m+3}]"
            if m == 7 and not zero: k("s_nop 1")
            k(f"ds_write_b128 v30, {src} offset:{L_ORED + m*16}")
        k("s_mov_b64 exec, -1")
        k("s_waitcnt lgkmcnt(0)")

    def spin_check(self, retry_label):
        k = self.k
        k(f"s_sub_u32 s{S_SPIN}, s{S_SPIN}, 1")
        k(f"s_cmp_eq_u32 s{S_SPIN}, 0")
        k("s_cbranch_scc1 L_end")
        k(f"s_branch {retry_label}")

    def tagacc(self, acc, regs, t1, t2, first=True):
        k = self.k
        for r in regs:
            for off, t in ((1, t1), (3, t2)):
                if first:
                    k(f"v_xor_b32 v{acc}, s{t}, v{r+off}"); first = False
                else:
                    k(f"v_bitop3_b32 v{acc}, v{r+off}, s{t}, v{acc} bitop3:0xbe")

    def helper_qpoll(self):
        k = self.k
        k(f"s_lshl_b32 s21, s{S_ABR}, 3"); k(f"s_add_u32 s20, s{S_X}, s21")
        k(f"s_lshl_b32 s23, s20, 13"); k(f"s_lshr_b32 s21, s{S_PAIR}, 3"); k("s_lshl_b32 s21, s21, 8")
        k("s_add_u32 s23, s23, s21"); k(f"s_add_u32 s23, s23, {WS_QP + WS_LOC}")
        k("s_add_u32 s22, s23, 4096")
        k("v_lshrrev_b32 v6, 4, v1"); k("v_lshlrev_b32 v6, 10, v6"); k("v_lshlrev_b32 v7, 4, v2"); k("v_add_u32 v6, v6, v7")
        k(f"s_mov_b32 s{S_SPIN}, {SPIN_MAX}")
        k.label("L_qd")
        k(f"s_and_b32 s20, s{S_SPIN}, {QMASK}"); k("s_cmp_eq_u32 s20, 0"); k(f"s_cselect_b32 s20, {WS_LOC}, 0")
        k("s_sub_u32 s21, s23, s20"); k("s_sub_u32 s20, s22, s20")
        k(f"buffer_load_dwordx4 v[96:99], v6, {SRW}, s21 offen sc1")
        k(f"buffer_load_dwordx4 v[100:103], v6, {SRW}, s21 offen offset:512 sc1")
        k(f"buffer_load_dwordx4 v[104:107], v6, {SRW}, s20 offen sc1")
        k(f"buffer_load_dwordx4 v[108:111], v6, {SRW}, s20 offen offset:512 sc1")
        k("s_waitcnt vmcnt(0)")
        if OPT.stamps:
            k(f"s_cmp_lg_u32 s{S_SPIN}, {SPIN_MAX}"); k("s_cbranch_scc1 L_qns"); self.stamp(4); k.label("L_qns")
        self.tagacc(8, [96, 100, 104, 108], S_TA1, S_TA2)
        k("v_cmp_ne_u32 vcc, 0, v8"); k("s_nop 4")
        k("s_cbranch_vccz L_qdok")
        self.spin_check("L_qd")
        k.label("L_qdok")
        self.stamp(5)
        if OPT.stamps: k(f"s_sub_u32 s{S_STAMP+2*13}, {SPIN_MAX}, s{S_SPIN}")
        k("s_mov_b32 s20, 0xffff0000")
        for ip in range(2):
            a = 96 + ip * 8; b = a + 4
            for d in (0, 2):
                k(f"v_lshlrev_b32 v8, 16, v{a+d}"); k(f"v_lshlrev_b32 v9, 16, v{b+d}")
                k(f"v_and_b32 v10, s20, v{a+d}"); k(f"v_and_b32 v11, s20, v{b+d}")
                k("v_add_f32 v8, v8, v9"); k("v_add_f32 v10, v10, v11")
                k(f"v_cvt_pk_bf16_f32 v{112 + ip*2 + d//2}, v8, v10")
        k("v_lshlrev_b32 v6, 3, v1")
        k(f"ds_write_b64 v6, v[112:113] offset:{L_QLDS}")
        k(f"ds_write_b64 v6, v[114:115] offset:{L_QLDS + 512}")
        k("s_waitcnt lgkmcnt(0)")

    def wg_norm(self):
        k = self.k
        k(f"s_lshr_b32 s20, s{S_WAVE}, 1"); k("s_lshl_b32 s20, s20, 2")
        k("v_and_b32 v6, 7, v1"); k("v_lshlrev_b32 v6, 4, v6"); k("v_add_u32 v6, s20, v6")
        k(f"ds_read_b32 v26, v6 offset:{L_LS}")
        k(f"ds_read_b32 v27, v6 offset:{L_MX}")
        k("s_waitcnt lgkmcnt(0)")
        for ctl in ("quad_perm:[1,0,3,2]", "quad_perm:[2,3,0,1]", "row_half_mirror"):
            k("s_nop 0")
            k(f"v_add_f32_dpp v26, v26, v26 {ctl} row_mask:0xf bank_mask:0xf")
            k(f"v_max_f32_dpp v27, v27, v27 {ctl} row_mask:0xf bank_mask:0xf")
        k("s_nop 0")
        k("v_log_f32 v7, v26"); k("v_rcp_f32 v26, v26"); k("s_nop 0")
        k(f"v_fma_f32 v27, v27, s{S_SCALE}, v7")
        k(f"s_and_b32 s20, s{S_TA2}, 0xff")
        k("v_and_b32 v27, 0xffffff00, v27"); k("v_or_b32 v27, s20, v27")

    def tail_consts(self):
        k = self.k
        k("v_and_b32 v20, 127, v0"); k("v_lshlrev_b32 v20, 4, v20"); k("v_lshrrev_b32 v21, 7, v0"); k("v_lshlrev_b32 v21, 2, v21"); k("v_add_u32 v20, v20, v21")
        k("v_lshlrev_b32 v21, 2, v0")
        k(f"s_lshl_b32 s67, s{S_AW}, 11"); k(f"s_add_u32 s67, s67, {WS_PO}")
        k(f"s_mul_i32 s20, s{S_WAVE}, {WX_STRIDE}"); k("v_add_u32 v22, s20, v5")
        k(f"s_lshl_b32 s20, s{S_WAVE}, 11"); k("v_lshlrev_b32 v30, 7, v2"); k("v_add_u32 v30, s20, v30")
        k(f"v_lshrrev_b32 v29, 1, v2"); k(f"v_mul_u32_u24 v29, {WX_STRIDE}, v29")
        k("v_and_b32 v6, 1, v2"); k("v_lshlrev_b32 v6, 7, v6"); k("v_add_u32 v29, v29, v6")
        k("v_lshlrev_b32 v6, 8, v3"); k("v_add_u32 v29, v29, v6")
        k(f"s_lshr_b32 s20, s{S_WAVE}, 1"); k("s_lshl_b32 s21, s20, 10"); k(f"s_and_b32 s22, s{S_WAVE}, 1"); k("s_lshl_b32 s22, s22, 3"); k("s_add_u32 s21, s21, s22")
        k("v_add_u32 v29, s21, v29")
        k("v_lshrrev_b32 v6, 2, v2"); k("v_and_b32 v6, 1, v6")
        k("v_lshlrev_b32 v28, 8, v6"); k("v_lshlrev_b32 v7, 4, v3"); k("v_add_u32 v28, v28, v7")
        k("s_lshl_b32 s20, s20, 6"); k("s_add_u32 s20, s20, s22"); k("v_add_u32 v23, s20, v28")
        k("v_and_b32 v7, 3, v2"); k("v_lshrrev_b32 v31, 3, v2"); k("v_lshl_add_u32 v7, v31, 2, v7")
        k(f"s_cmp_eq_u32 s{S_PBR}, 0"); k("s_cselect_b32 s22, 3, 12"); k("s_cselect_b32 s23, 0, 6")
        k(f"s_mul_i32 s21, s{S_X}, 30"); k("s_add_u32 s23, s23, s21")
        k("v_mul_lo_u32 v6, v6, s22"); k("v_add_u32 v6, s23, v6"); k("v_add_u32 v6, v6, v7")
        k(f"s_and_b32 s21, s{S_H}, 3")
        k("v_cmp_gt_u32 s[46:47], s22, v7")
        k("v_add_u32 v7, 8, v7")
        k("v_cmp_gt_u32 s[14:15], s22, v7")
        k("v_lshlrev_b32 v24, 11, v6"); k("v_lshlrev_b32 v7, 4, v3"); k("v_add_u32 v24, v24, v7")
        k(f"s_lshl_b32 s44, s21, 9"); k(f"s_lshl_b32 s45, s{S_WAVE}, 6"); k("s_add_u32 s44, s44, s45"); k(f"s_add_u32 s44, s44, {WS_PO + WS_LOC}")
        k(f"s_lshl_b32 s45, s{S_TP2}, 24")
        k("v_mov_b32 v7, 0x80000000")
        k("v_add_u32 v25, 0x4000, v24")
        k("v_cndmask_b32 v24, v7, v24, s[46:47]")
        k("v_cndmask_b32 v25, v7, v25, s[14:15]")
        k(f"s_lshl_b32 s21, s{S_PBR}, 2"); k(f"s_add_u32 s21, s21, s{S_KQ}"); k("s_lshl_b32 s21, s21, 5"); k(f"s_add_u32 s21, s21, s{S_H}")
        k("s_lshl_b32 s21, s21, 11"); k(f"s_lshl_b32 s20, s{S_WAVE}, 7"); k("s_add_u32 s21, s21, s20"); k(f"s_add_u32 s68, s21, {WS_OP}")
        k("v_lshlrev_b32 v31, 10, v3"); k("v_lshrrev_b32 v7, 1, v2"); k("v_lshlrev_b32 v7, 4, v7"); k("v_add_u32 v31, v31, v7")
        k(f"s_mov_b32 s{S_SPIN}, {SPIN_MAX}")

    def publish_po(self):
        k = self.k
        for w in range(8):
            k(f"ds_read_b32 v{8+w}, v20 offset:{L_ORED + w*2048}")
        k(f"v_mov_b32 v18, v27"); k(f"v_mov_b32 v19, s{S_TA1}")
        k("s_mov_b32 s20, 0x11111111"); k("s_mov_b32 s21, 0x11111111")
        k("s_waitcnt lgkmcnt(0)")
        k("v_add_f32 v8, v8, v9"); k("v_add_f32 v10, v10, v11"); k("v_add_f32 v12, v12, v13"); k("v_add_f32 v14, v14, v15")
        k("v_add_f32 v8, v8, v10"); k("v_add_f32 v12, v12, v14"); k("v_add_f32 v8, v8, v12")
        k("v_mul_f32 v8, v8, v26")
        k("s_nop 1")
        k("v_mov_b32_dpp v9, v8 quad_perm:[1,0,3,2] row_mask:0xf bank_mask:0xf")
        k("v_cvt_pk_bf16_f32 v16, v8, v9")
        k("s_nop 1")
        k("v_mov_b32_dpp v17, v16 quad_perm:[2,3,0,1] row_mask:0xf bank_mask:0xf")
        k("s_mov_b64 exec, s[20:21]")
        k(f"s_add_u32 s22, s67, {WS_LOC}")
        k(f"buffer_store_dwordx4 v[16:19], v21, {SRW}, s22 offen")
        k(f"buffer_store_dwordx4 v[16:19], v21, {SRW}, s67 offen sc1")
        k("s_mov_b64 exec, -1")

    def t2_loads(self, so="s44"):
        k = self.k
        k(f"buffer_load_dwordx4 v[96:99], v24, {SRW}, {so} offen sc1")
        k(f"buffer_load_dwordx4 v[100:103], v25, {SRW}, {so} offen sc1")

    def wo_exchange(self):
        k = self.k
        for m in range(8):
            t = 32 + 2 * m
            sel = f"s{S_SELLO}" if (m & 1) == 0 else f"s{S_SELHI}"
            q = m >> 1
            k(f"v_perm_b32 v{t}, v{52+q}, v{48+q}, {sel}")
            k(f"v_perm_b32 v{t+1}, v{60+q}, v{56+q}, {sel}")
            k(f"ds_write_b64 v29, v[{32+2*m}:{33+2*m}] offset:{L_WX + m*16}")
        k("s_waitcnt lgkmcnt(0)")

    def t2_t3(self):
        k = self.k
        for j in range(4):
            k(f"ds_read_b128 v[{64+4*j}:{67+4*j}], v22 offset:{L_WX + j*1024}")
        k(f"v_mov_b32 v13, s{S_TP1}"); k(f"v_mov_b32 v15, s{S_TP2}")
        self.stamp(10)
        k("s_branch L_t2w")
        k.label("L_t2")
        k(f"s_and_b32 s20, s{S_SPIN}, {TMASK}"); k("s_cmp_eq_u32 s20, 0"); k(f"s_cselect_b32 s20, {WS_LOC}, 0")
        k("s_sub_u32 s20, s44, s20")
        self.t2_loads("s20")
        k.label("L_t2w")
        k("s_waitcnt vmcnt(0)")
        k("v_lshlrev_b32 v8, 24, v98"); k("v_lshlrev_b32 v9, 24, v102")
        k("v_xor_b32 v8, s45, v8"); k("v_xor_b32 v9, s45, v9")
        k(f"v_bitop3_b32 v8, v99, s{S_TP1}, v8 bitop3:0xbe"); k(f"v_bitop3_b32 v9, v103, s{S_TP1}, v9 bitop3:0xbe")
        k("v_cmp_ne_u32 vcc, 0, v8"); k("v_cmp_ne_u32 s[20:21], 0, v9")
        k("s_nop 3")
        k("s_and_b64 vcc, vcc, s[46:47]"); k("s_and_b64 s[20:21], s[20:21], s[14:15]")
        k("s_or_b64 vcc, vcc, s[20:21]")
        k("s_cbranch_scc0 L_t2ok")
        self.spin_check("L_t2")
        k.label("L_t2ok")
        self.stamp(11)
        if OPT.stamps: k(f"s_sub_u32 s{S_STAMP+2*15}, {SPIN_MAX}, s{S_SPIN}")
        k("v_mov_b32 v10, 0xff800000"); k("s_mov_b32 s20, 0xffff0000")
        k("v_cndmask_b32 v98, v10, v98, s[46:47]"); k("v_cndmask_b32 v102, v10, v102, s[14:15]")
        k("v_max_f32 v8, v98, v102")
        k("v_lshlrev_b32 v104, 16, v96"); k("v_and_b32 v105, s20, v96")
        k("v_max_f32_dpp v8, v8, v8 quad_perm:[1,0,3,2] row_mask:0xf bank_mask:0xf")
        k("v_lshlrev_b32 v106, 16, v97"); k("v_and_b32 v107, s20, v97")
        k("v_max_f32_dpp v8, v8, v8 quad_perm:[2,3,0,1] row_mask:0xf bank_mask:0xf")
        k("v_lshlrev_b32 v108, 16, v100"); k("v_and_b32 v109, s20, v100")
        k("v_max_f32_dpp v8, v8, v8 row_ror:8 row_mask:0xf bank_mask:0xf")
        k("v_lshlrev_b32 v110, 16, v101"); k("v_and_b32 v111, s20, v101")
        k("v_sub_f32 v98, v98, v8"); k("v_sub_f32 v102, v102, v8")
        k("v_exp_f32 v98, v98"); k("v_exp_f32 v102, v102"); k("s_nop 0")
        k("v_add_f32 v114, v98, v102")
        p0 = (104, 105, 106, 107); p1 = (108, 109, 110, 111)
        for i in range(4): k(f"v_mul_f32 v{p0[i]}, v98, v{p0[i]}")
        for i in range(4): k(f"v_fma_f32 v{p0[i]}, v102, v{p1[i]}, v{p0[i]}")
        for ctl in ("quad_perm:[1,0,3,2]", "quad_perm:[2,3,0,1]", "row_ror:8"):
            for r in (114,) + p0:
                k(f"v_add_f32_dpp v{r}, v{r}, v{r} {ctl} row_mask:0xf bank_mask:0xf")
        k("v_rcp_f32 v114, v114"); k("s_nop 0")
        for r in p0: k(f"v_mul_f32 v{r}, v114, v{r}")
        k("v_cvt_pk_bf16_f32 v96, v104, v105"); k("v_cvt_pk_bf16_f32 v97, v106, v107")
        k("s_mov_b32 s20, 0x00110011"); k("s_mov_b32 s21, 0x00110011")
        k("s_mov_b64 exec, s[20:21]")
        k(f"ds_write_b64 v23, v[96:97] offset:{L_OLDS}")
        k("s_mov_b64 exec, -1")
        k("s_waitcnt lgkmcnt(0)")
        k("s_barrier")
        for j in range(4):
            k(f"ds_read_b128 v[{80+4*j}:{83+4*j}], v28 offset:{L_OLDS + j*64}")
        for j in range(4):
            k(f"s_waitcnt lgkmcnt({3-j})")
            c = "0" if j == 0 else "v[8:11]"
            k(f"v_mfma_f32_16x16x32_bf16 v[8:11], v[{80+4*j}:{83+4*j}], v[{64+4*j}:{67+4*j}], {c}")
        k("s_mov_b32 s20, 0x55555555"); k("s_mov_b32 s21, 0")
        k("s_nop 5")
        k("v_mov_b32 v12, v8")
        k("v_mov_b32_dpp v14, v8 quad_perm:[1,0,3,2] row_mask:0xf bank_mask:0xf")
        k("s_mov_b64 exec, s[20:21]")
        k(f"buffer_store_dwordx4 v[12:15], v31, {SRW}, s68 offen sc1")
        k("s_mov_b64 exec, -1")
        self.stamp(12)

    def t4_consts(self):
        k = self.k
        k(f"s_lshr_b32 s21, s{S_X}, 1"); k(f"s_lshl_b32 s22, s{S_PBR}, 2"); k("s_add_u32 s21, s21, s22")
        k(f"s_and_b32 s22, s{S_X}, 1")
        k("s_lshl_b32 s23, s21, 16"); k("s_lshl_b32 s4, s22, 10"); k("s_add_u32 s23, s23, s4")
        k(f"s_lshl_b32 s4, s{S_WAVE}, 7"); k("s_add_u32 s23, s23, s4"); k(f"s_add_u32 s69, s23, {WS_OP}")
        k("s_add_u32 s3, s69, 16384"); k("s_add_u32 s4, s69, 32768"); k("s_add_u32 s5, s69, 49152")
        k("v_lshrrev_b32 v120, 3, v1"); k("v_lshlrev_b32 v120, 11, v120"); k("v_and_b32 v121, 7, v1"); k("v_lshlrev_b32 v121, 4, v121"); k("v_add_u32 v120, v120, v121")
        k("s_lshl_b32 s22, s22, 11"); k("s_lshl_b32 s21, s21, 8"); k("s_add_u32 s22, s22, s21")
        k(f"s_lshl_b32 s21, s{S_WAVE}, 5"); k("s_add_u32 s10, s22, s21")
        k("v_lshlrev_b32 v121, 2, v1")

    def t4(self):
        k = self.k
        k(f"s_mov_b32 s{S_SPIN}, {SPIN_MAX}")
        k.label("L_t4")
        for i, so in enumerate(("s69", "s3", "s4", "s5")):
            k(f"buffer_load_dwordx4 v[{32+4*i}:{35+4*i}], v120, {SRW}, {so} offen sc1")
        k("s_waitcnt vmcnt(0)")
        self.tagacc(8, [32, 36, 40, 44], S_TP1, S_TP2)
        k("v_cmp_ne_u32 vcc, 0, v8"); k("s_nop 4")
        k("s_cbranch_vccz L_t4ok")
        self.spin_check("L_t4")
        k.label("L_t4ok")
        self.stamp(13)
        k("v_add_f32 v8, v32, v36"); k("v_add_f32 v9, v34, v38"); k("v_add_f32 v10, v40, v44"); k("v_add_f32 v11, v42, v46")
        k("v_add_f32 v8, v8, v10"); k("v_add_f32 v9, v9, v11")
        k("s_nop 1")
        k("v_add_f32_dpp v8, v8, v8 row_ror:8 row_mask:0xf bank_mask:0xf"); k("v_add_f32_dpp v9, v9, v9 row_ror:8 row_mask:0xf bank_mask:0xf")
        for sw in ("v_permlane16_swap_b32", "v_permlane32_swap_b32"):
            k("v_mov_b32 v10, v8"); k("v_mov_b32 v11, v9"); k("s_nop 1")
            k(f"{sw} v8, v10"); k(f"{sw} v9, v11")
            k("v_add_f32 v8, v8, v10"); k("v_add_f32 v9, v9, v11")
        k("v_cvt_pk_bf16_f32 v8, v8, v9")
        k("s_mov_b64 exec, 0xff")
        k(f"buffer_store_dword v8, v121, s[{SRD_OUT}:{SRD_OUT+3}], s10 offen")
        k("s_mov_b64 exec, -1")

    def dump_stamps(self, n=16):
        if not OPT.stamps: return
        k = self.k
        k("s_waitcnt lgkmcnt(0)")
        k("v_mov_b32 v8, 0")
        for i in range(n):
            k(f"v_writelane_b32 v8, s{S_STAMP+2*i}, {i}")
        k(f"s_lshl_b32 s20, s2, 3"); k(f"s_add_u32 s20, s20, s{S_WAVE}"); k("s_lshl_b32 s20, s20, 6"); k(f"s_add_u32 s20, s20, {WS_ST}")
        k("v_lshlrev_b32 v9, 2, v1")
        k("s_mov_b64 exec, 0xffff")
        k(f"buffer_store_dword v8, v9, {SRW}, s20 offen")
        k("s_mov_b64 exec, -1")

    def build(self):
        k = self.k
        if OPT.stamps:
            for i in range(16):
                k(f"s_mov_b32 s{S_STAMP+2*i}, 0")
        self.prologue()
        k("s_setprio 3")
        self.wq_loads()
        k("s_cmp_lg_u32 s9, 0"); k("s_cbranch_scc1 L_spare")
        k(f"s_cmp_eq_u32 s{S_WAVE}, 7"); k("s_cbranch_scc1 L_helper")
        k("s_setprio 2")
        self.kload(0, (0,))
        k("s_waitcnt vmcnt(4)")
        self.stamp(2)
        self.kload(0, (1,))
        self.qproj_compute()
        self.nonce_ready()
        k("s_barrier")
        self.stamp(3)
        k(f"s_cmp_lg_u32 s{S_WAVE}, {PUB_WAVE}"); k("s_cbranch_scc1 L_d_nopub")
        self.q_publish()
        k.label("L_d_nopub")
        self.kload(1); self.kload(2)
        k("s_setprio 1")
        self.vload(0); self.vload(1)
        if not OPT.early_b: self.vload(2)
        self.stamp(4)
        k("s_barrier")
        self.stamp(5)
        self.q_operand()
        k("s_waitcnt lgkmcnt(0)")
        x = 0 if OPT.early_b else 8
        self.qk(0, 32 + x); self.qk(1, 24 + x); self.qk(2, 16 + x)
        k("s_nop 7")
        self.stamp(6)
        self.smax(24, 50, 51)
        k("s_barrier")
        self.stamp(7)
        if OPT.early_b: self.vload(2)
        else: k("s_setprio 0"); self.wo_loads()
        self.softmax(24, 44, 45, 32)
        k("s_waitcnt lgkmcnt(0)")
        k("s_barrier")
        self.wg_norm()
        if OPT.early_b: k("s_setprio 0"); self.wo_loads()
        self.tail_consts()
        self.stamp(8)
        self.pv(0, 20, True); self.pv(1, 12, False); self.pv(2, 4, False)
        k("s_nop 5")
        self.o_to_lds()
        k("s_branch L_D")
        k.label("L_helper")
        k("s_waitcnt vmcnt(0)")
        self.stamp(2)
        self.qproj_compute()
        self.nonce_ready()
        k("s_barrier")
        self.stamp(3)
        k(f"s_cmp_lg_u32 s{S_THIRD}, 0"); k("s_cbranch_scc1 L_h_nok")
        self.kload(0)
        k.label("L_h_nok")
        self.helper_qpoll()
        k("s_barrier")
        self.stamp(6)
        k(f"s_cmp_lg_u32 s{S_THIRD}, 0"); k("s_cbranch_scc1 L_h_nounit")
        self.vload(0)
        self.q_operand()
        k("s_waitcnt lgkmcnt(0)")
        self.qk(0, 63 - 4)
        k("s_nop 7")
        self.smax(8, 50, 51)
        k("s_barrier")
        self.wo_loads()
        self.softmax(8, 44, 45, 32)
        k("s_waitcnt lgkmcnt(0)")
        k("s_barrier")
        self.wg_norm()
        self.tail_consts()
        self.pv(0, 4, True)
        k("s_nop 5")
        self.o_to_lds()
        k("s_branch L_D")
        k.label("L_h_nounit")
        self.smax(0, 50, 51)
        k("s_barrier")
        self.wo_loads()
        self.softmax(0, 44, 45, 32)
        k("s_waitcnt lgkmcnt(0)")
        k("s_barrier")
        self.wg_norm()
        self.tail_consts()
        self.o_to_lds(zero=True)
        k.label("L_D")
        k("s_barrier")
        self.stamp(9)
        self.publish_po()
        self.t2_loads()
        k("s_waitcnt vmcnt(4)")
        k("s_branch L_join")
        k.label("L_spare")
        k("s_waitcnt vmcnt(0)")
        self.qproj_compute()
        self.nonce_ready()
        k("s_barrier")
        k(f"s_cmp_lg_u32 s{S_WAVE}, {PUB_WAVE}"); k("s_cbranch_scc1 L_s_nopub")
        self.q_publish()
        k.label("L_s_nopub")
        self.wo_loads()
        self.tail_consts()
        self.t4_consts()
        self.t2_loads()
        k("s_waitcnt vmcnt(2)")
        k.label("L_join")
        self.wo_exchange()
        k("s_barrier")
        self.t2_t3()
        k("s_cmp_eq_u32 s9, 0"); k("s_cbranch_scc1 L_fin")
        self.t4()
        self.stamp(14)
        k(f"s_or_b32 s20, s{S_X}, s{S_WAVE}"); k("s_cmp_lg_u32 s20, 0"); k("s_cbranch_scc1 L_fin")
        k(f"v_mov_b32 v8, s{S_TP1}"); k("v_mov_b32 v9, 0"); k(f"s_lshl_b32 s20, s{S_PBR}, 7")
        k("s_mov_b64 exec, 1")
        k(f"buffer_store_dword v8, v9, {SRW}, s20 offen")
        k("s_mov_b64 exec, -1")
        k.label("L_fin")
        self.dump_stamps()
        k.label("L_end")
        k("s_endpgm")
        return k.text()

def build():
    body = Gen().build()
    name = NAME + "_kernel"
    hdr = f"""; @launch grid=(256,1,1) block=(512,1,1) lds={LDS_SIZE}
.amdgcn_target "amdgcn-amd-amdhsa--gfx950"
.text
.globl {name}
.p2align 8
.type {name},@function
{name}:
"""
    kd = f""".section .rodata,"a"
.p2align 6
.amdhsa_kernel {name}
  .amdhsa_next_free_vgpr 256
  .amdhsa_next_free_sgpr 102
  .amdhsa_accum_offset 160
  .amdhsa_group_segment_fixed_size 0
  .amdhsa_kernarg_size 104
  .amdhsa_user_sgpr_count 2
  .amdhsa_user_sgpr_kernarg_segment_ptr 1
  .amdhsa_system_sgpr_workgroup_id_x 1
.end_amdhsa_kernel
"""
    return hdr + body + kd

if __name__ == "__main__":
    for a in sys.argv[2:]:
        if a == "stamps": OPT.stamps = True
        if a == "lateb": OPT.early_b = False
        if a == "nont": OPT.nt_kv = ""; OPT.nt_w = ""
    open(sys.argv[1], "w").write(build())
```

```python
import sys, struct
NAME = "concat_heads__sliding_block_cached__gqa_block_cached__decode"

class K:
    def __init__(self): self.L = []
    def __call__(self, s): self.L.append("    " + s)
    def label(self, s): self.L.append(s + ":")
    def text(self): return "\n".join(self.L) + "\n"

def f32bits(x): return struct.unpack("<I", struct.pack("<f", x))[0]

WS_EP = 0x0
WS_QP = 0x2000
WS_PO = 0x22000
WS_OP = 0x9A000
WS_LOC = 0x120000
WS_ST = 0x1C0000
WS_SIZE = 0x1E0000
QMASK = 3
TMASK = 15

L_QRED = 0x0000
L_QLDS = 0x2000
L_MX = 0x2400
L_LS = 0x2480
L_FLG = 0x24C0 + 0x40
L_OLDS = 0x2600
L_ORED = 0x2800
L_WX = 0x6800
WX_STRIDE = 4128
L_CST = L_WX + 8 * WX_STRIDE + 0x100
L_CST = (L_CST + 255) & ~255
LDS_SIZE = L_CST + 3 * 8192

SEL_LO = 0x05040100
SEL_HI = 0x07060302
TAGX = 0x5bd1e995
SCALE_LOG2E = (128 ** -0.5) * 1.4426950408889634
SPIN_MAX = 100015

class Opt:
    nt_kv = " nt"
    nt_w = " nt"
    stamps = False
    pre_k = 1
    t4sets = 1
    touch = 0
    dbg = 0
OPT = Opt()

S_X = 8; S_SPARE = 9; S_AW = 11; S_WAVE = 12; S_KVOFF = 13
S_TP1 = 16; S_TP2 = 17; S_TA1 = 18; S_TA2 = 19
SRD_K = 24; SRD_V = 28; SRD_WS = 32; SRD_WQ = 36
S_SELLO = 40; S_SELHI = 41; S_SCALE = 42; S_IP = 43
S_T2OFF = 44; S_TB = 45
SRD_WO = 48; SRD_X = 52; SRD_OUT = 56
S_PBR = 60; S_H = 61; S_CG = 62; S_PAIR = 63; S_ABR = 64; S_SPIN = 65; S_THIRD = 66
S_POOFF = 67; S_OPOFF = 6; S_WOOFF = 7
S_STAMP = 70
SRW = f"s[{SRD_WS}:{SRD_WS+3}]"
V_ORD = 20; V_POV = 21; V_WXR = 22; V_OLW = 23; V_T20 = 24; V_T21 = 25; V_OLR = 26; V_WXW = 27; V_ORW = 28; V_OPV = 29; V_INVL = 30; V_LAM = 31

def srd(k, d, lo, hi, size):
    k(f"s_mov_b32 s{d}, s{lo}")
    k(f"s_and_b32 s{d+1}, s{hi}, 0xffff")
    k(f"s_mov_b32 s{d+2}, {size}")
    k(f"s_mov_b32 s{d+3}, 0x20000")

class Gen:
    def __init__(self):
        self.k = K()
    def stamp(self, idx):
        if OPT.stamps:
            self.k(f"s_memrealtime s[{S_STAMP+2*idx}:{S_STAMP+2*idx+1}]")

    def prologue(self):
        k = self.k
        k("s_cmp_ge_u32 s2, 256"); k("s_cbranch_scc1 L_end")
        self.stamp(0)
        if OPT.dbg: k("s_memrealtime s[70:71]")
        k("s_lshr_b32 s3, s2, 3"); k(f"s_lshr_b32 s{S_PBR}, s3, 4")
        k(f"s_mul_i32 s4, s{S_PBR}, 40"); k("s_add_u32 s6, s0, s4"); k("s_addc_u32 s7, s1, 0")
        k("s_load_dwordx2 s[20:21], s[6:7], 0")
        k("s_load_dwordx4 s[44:47], s[6:7], 24")
        k(f"s_sub_u32 s{S_IP}, s3, s{S_PBR}")
        k(f"s_cmp_ge_u32 s{S_IP}, 6"); k(f"s_cselect_b32 s{S_ABR}, 1, 0")
        k(f"s_mul_i32 s4, s{S_ABR}, 40"); k("s_add_u32 s8, s0, s4"); k("s_addc_u32 s9, s1, 0")
        k("s_load_dwordx4 s[16:19], s[8:9], 8")
        k("s_load_dwordx2 s[14:15], s[0:1], 96")
        k("s_load_dwordx2 s[22:23], s[0:1], 80")
        k("v_and_b32 v1, 63, v0"); k("v_lshrrev_b32 v2, 6, v0"); k("v_lshrrev_b32 v3, 4, v1")
        k(f"v_readfirstlane_b32 s{S_WAVE}, v2")
        k("v_lshlrev_b32 v9, 2, v2"); k("v_mov_b32 v10, 0")
        k(f"ds_write_b32 v9, v10 offset:{L_FLG}")
        k("v_and_b32 v2, 15, v1")
        k(f"s_and_b32 s{S_X}, s2, 7")
        k("v_lshlrev_b32 v6, 16, v3"); k("v_lshrrev_b32 v7, 3, v2"); k("v_lshl_add_u32 v6, v7, 15, v6")
        k("v_and_b32 v7, 7, v2"); k("v_lshl_add_u32 v6, v7, 4, v6")
        k("v_bfe_u32 v7, v2, 1, 1"); k("v_lshlrev_b32 v7, 10, v7"); k("v_lshl_add_u32 v7, v3, 4, v7")
        k("v_and_b32 v8, 1, v2"); k("v_lshl_add_u32 v7, v8, 3, v7")
        k("s_and_b32 s4, s3, 1"); k("s_lshl_b32 s4, s4, 8"); k(f"s_lshl_b32 s5, s{S_WAVE}, 5"); k("s_add_u32 s4, s4, s5")
        k("s_lshl_b32 s5, s4, 1")
        k("s_lshl_b32 s10, s4, 13"); k("s_bfe_u32 s4, s3, 0x30001")
        k("s_setprio 3")
        k("s_waitcnt lgkmcnt(0)")
        srd(k, SRD_X, 20, 21, 2048)
        srd(k, SRD_WQ, 44, 45, 4 << 20)
        k(f"s_lshl_b32 s20, s{S_X}, 3"); k("s_add_u32 s4, s4, s20"); k("s_lshl_b32 s4, s4, 7"); k("s_add_u32 s10, s10, s4")
        k(f"buffer_load_dwordx2 v[32:33], v7, s[{SRD_X}:{SRD_X+3}], s5 offen")
        for e in range(4):
            k(f"buffer_load_dwordx4 v[{48+4*e}:{51+4*e}], v6, s[{SRD_WQ}:{SRD_WQ+3}], s10 offen{OPT.nt_w}")
            if e < 3: k("s_add_u32 s10, s10, 8192")
        self.stamp(1)

    def setup2(self):
        k = self.k
        k(f"s_load_dword s68, s[14:15], {WS_EP}")
        k(f"s_load_dword s69, s[14:15], {WS_EP + 128}")
        srd(k, SRD_K, 16, 17, 32 << 20)
        srd(k, SRD_V, 18, 19, 32 << 20)
        srd(k, SRD_WS, 14, 15, WS_SIZE)
        k(f"s_mul_hi_u32 s3, s{S_IP}, 0x55555556")
        k(f"s_mul_i32 s4, s3, 3"); k(f"s_sub_u32 s{S_THIRD}, s{S_IP}, s4")
        k("s_sub_u32 s5, s3, 2"); k("s_lshr_b32 s10, s5, 2"); k("s_and_b32 s5, s5, 3"); k("s_lshl_b32 s5, s5, 11")
        k("s_cmp_ge_u32 s3, 2")
        k(f"s_cselect_b32 s10, s10, s3"); k("s_cselect_b32 s5, s5, 6144")
        k(f"s_lshl_b32 s10, s10, 3"); k(f"s_add_u32 s{S_PAIR}, s10, s{S_X}")
        k(f"s_mul_i32 s10, s{S_THIRD}, 21"); k(f"s_cmp_gt_u32 s{S_THIRD}, 0"); k("s_addc_u32 s10, s10, 0")
        k(f"s_mul_i32 s4, s{S_WAVE}, 3"); k("s_add_u32 s10, s10, s4")
        k("s_lshl_b32 s10, s10, 5"); k("s_add_u32 s10, s10, s5"); k("s_lshl_b32 s10, s10, 8")
        k(f"s_lshl_b32 s{S_KVOFF}, s{S_PAIR}, 21"); k(f"s_add_u32 s{S_KVOFF}, s{S_KVOFF}, s10")
        k("v_and_b32 v4, 3, v2"); k("v_lshlrev_b32 v4, 2, v4"); k("v_lshrrev_b32 v5, 2, v2"); k("v_add_u32 v4, v4, v5")
        k("v_lshlrev_b32 v4, 8, v4"); k("v_lshl_add_u32 v4, v3, 4, v4")
        k("v_lshlrev_b32 v5, 4, v1")
        k("s_lshr_b32 s3, s2, 3"); k("s_and_b32 s3, s3, 15"); k("s_cmp_eq_u32 s3, 15"); k(f"s_cselect_b32 s{S_SPARE}, 1, 0")

    def setup3(self):
        k = self.k
        srd(k, SRD_WO, 46, 47, 4 << 20)
        srd(k, SRD_OUT, 22, 23, 4096)
        k(f"s_mov_b32 s{S_SELLO}, 0x{SEL_LO:x}"); k(f"s_mov_b32 s{S_SELHI}, 0x{SEL_HI:x}")
        k(f"s_mov_b32 s{S_SCALE}, 0x{f32bits(SCALE_LOG2E):x}")
        k(f"s_lshr_b32 s{S_H}, s2, 5"); k(f"s_and_b32 s{S_H}, s{S_H}, 3"); k(f"s_lshl_b32 s4, s{S_X}, 2"); k(f"s_add_u32 s{S_H}, s{S_H}, s4")
        k(f"s_bfe_u32 s{S_CG}, s2, 0x20003")
        k(f"s_mul_i32 s{S_AW}, s{S_X}, 30"); k(f"s_add_u32 s{S_AW}, s{S_AW}, s{S_IP}")
        k(f"s_lshl_b32 s{S_POOFF}, s{S_AW}, 11"); k(f"s_add_u32 s{S_POOFF}, s{S_POOFF}, {WS_PO}")
        k(f"s_lshl_b32 s20, s{S_H}, 7"); k(f"s_lshl_b32 s21, s{S_WAVE}, 4"); k("s_add_u32 s20, s20, s21")
        k("s_lshl_b32 s20, s20, 10"); k(f"s_lshl_b32 s21, s{S_CG}, 8"); k(f"s_add_u32 s{S_WOOFF}, s20, s21")
        k(f"s_lshl_b32 s21, s{S_PBR}, 2"); k(f"s_add_u32 s21, s21, s{S_CG}"); k("s_lshl_b32 s21, s21, 5"); k(f"s_add_u32 s21, s21, s{S_H}")
        k("s_lshl_b32 s21, s21, 11"); k(f"s_lshl_b32 s20, s{S_WAVE}, 7"); k("s_add_u32 s21, s21, s20"); k(f"s_add_u32 s{S_OPOFF}, s21, {WS_OP}")
        k(f"s_and_b32 s21, s{S_H}, 3"); k(f"s_lshl_b32 s{S_T2OFF}, s21, 9"); k(f"s_lshl_b32 s20, s{S_WAVE}, 6")
        k(f"s_add_u32 s{S_T2OFF}, s{S_T2OFF}, s20"); k(f"s_add_u32 s{S_T2OFF}, s{S_T2OFF}, {WS_PO + WS_LOC}")
        a = 8
        ORD, POV, WXR, OLW, T20, T21, OLR, WXW, ORW, OPV = range(a, a + 10)
        k(f"v_and_b32 v{ORD}, 127, v0"); k(f"v_lshlrev_b32 v{ORD}, 4, v{ORD}"); k(f"v_lshrrev_b32 v{POV}, 7, v0"); k(f"v_lshl_add_u32 v{ORD}, v{POV}, 2, v{ORD}")
        k(f"v_lshlrev_b32 v{POV}, 2, v0")
        k(f"s_mul_i32 s20, s{S_WAVE}, {WX_STRIDE}"); k(f"v_add_u32 v{WXR}, s20, v5")
        k(f"s_lshl_b32 s20, s{S_WAVE}, 11"); k(f"v_lshlrev_b32 v{ORW}, 7, v2"); k(f"v_add_u32 v{ORW}, s20, v{ORW}")
        k(f"v_lshrrev_b32 v{WXW}, 1, v2"); k(f"v_mul_u32_u24 v{WXW}, {WX_STRIDE}, v{WXW}")
        k(f"v_and_b32 v18, 1, v2"); k(f"v_lshl_add_u32 v{WXW}, v18, 7, v{WXW}"); k(f"v_lshl_add_u32 v{WXW}, v3, 8, v{WXW}")
        k(f"s_lshr_b32 s20, s{S_WAVE}, 1"); k("s_lshl_b32 s21, s20, 10"); k(f"s_and_b32 s22, s{S_WAVE}, 1"); k("s_lshl_b32 s22, s22, 3"); k("s_add_u32 s21, s21, s22")
        k(f"v_add_u32 v{WXW}, s21, v{WXW}")
        k("v_bfe_u32 v18, v2, 2, 1")
        k(f"v_lshlrev_b32 v{OLR}, 8, v18"); k(f"v_lshl_add_u32 v{OLR}, v3, 4, v{OLR}")
        k("s_lshl_b32 s20, s20, 6"); k("s_add_u32 s20, s20, s22"); k(f"v_add_u32 v{OLW}, s20, v{OLR}")
        k("v_and_b32 v19, 3, v2"); k("v_lshrrev_b32 v24, 3, v2"); k("v_lshl_add_u32 v19, v24, 2, v19")
        k(f"s_cmp_eq_u32 s{S_PBR}, 0"); k("s_cselect_b32 s22, 3, 12"); k("s_cselect_b32 s23, 0, 6")
        k(f"s_mul_i32 s21, s{S_X}, 30"); k("s_add_u32 s23, s23, s21")
        k("v_mul_lo_u32 v18, v18, s22"); k("v_add_u32 v18, s23, v18"); k("v_add_u32 v18, v18, v19")
        k("v_cmp_gt_u32 s[46:47], s22, v19")
        k("v_add_u32 v19, 8, v19")
        k("v_cmp_gt_u32 s[14:15], s22, v19")
        k(f"v_lshlrev_b32 v{T20}, 11, v18"); k(f"v_lshl_add_u32 v{T20}, v3, 4, v{T20}")
        k("v_mov_b32 v19, 0x80000000")
        k(f"v_add_u32 v{T21}, 0x4000, v{T20}")
        k(f"v_cndmask_b32 v{T20}, v19, v{T20}, s[46:47]")
        k(f"v_cndmask_b32 v{T21}, v19, v{T21}, s[14:15]")
        k(f"v_lshlrev_b32 v{OPV}, 10, v3"); k("v_lshrrev_b32 v19, 1, v2"); k(f"v_lshl_add_u32 v{OPV}, v19, 4, v{OPV}")
        k("v_lshlrev_b32 v19, 4, v0")
        k(f"v_add_u32 v19, {L_CST}, v19")
        k(f"ds_write_b128 v19, v[8:11]")
        k(f"ds_write_b128 v19, v[12:15] offset:8192")
        k(f"ds_write_b64 v19, v[16:17] offset:16384")

    def load_consts(self):
        k = self.k
        k("v_lshlrev_b32 v6, 4, v0"); k(f"v_add_u32 v6, {L_CST}, v6")
        k(f"ds_read_b128 v[{V_ORD}:{V_ORD+3}], v6")
        k(f"ds_read_b128 v[{V_T20}:{V_T20+3}], v6 offset:8192")
        k(f"ds_read_b64 v[{V_ORW}:{V_ORW+1}], v6 offset:16384")

    def nonce_ready(self):
        k = self.k
        k(f"s_cmp_eq_u32 s{S_PBR}, 0"); k(f"s_cselect_b32 s{S_TP1}, s68, s69")
        k(f"s_cmp_eq_u32 s{S_ABR}, 0"); k(f"s_cselect_b32 s{S_TA1}, s68, s69")
        k(f"s_add_u32 s{S_TP1}, s{S_TP1}, 1"); k(f"s_add_u32 s{S_TA1}, s{S_TA1}, 1")
        k(f"s_xor_b32 s{S_TP2}, s{S_TP1}, 0x{TAGX:x}"); k(f"s_xor_b32 s{S_TA2}, s{S_TA1}, 0x{TAGX:x}")
        k(f"s_lshl_b32 s{S_TB}, s{S_TP2}, 24")

    def kload(self, u, tiles=(0, 1)):
        k = self.k
        for t in tiles:
            k(f"s_add_u32 s20, s{S_KVOFF}, {u*8192 + t*4096}")
            for j in range(4):
                a = (u * 8 + t * 4 + j) * 4
                k(f"buffer_load_dwordx4 a[{a}:{a+3}], v4, s[{SRD_K}:{SRD_K+3}], s20 offen offset:{j*64}{OPT.nt_kv}")

    def vload(self, u):
        k = self.k
        for i in range(8):
            if i % 4 == 0: k(f"s_add_u32 s20, s{S_KVOFF}, {u*8192 + (i//4)*4096}")
            r = 64 + (u * 8 + i) * 4
            k(f"buffer_load_dwordx4 v[{r}:{r+3}], v5, s[{SRD_V}:{SRD_V+3}], s20 offen offset:{(i&3)*1024}{OPT.nt_kv}")

    def wo_loads(self):
        k = self.k
        k("v_lshlrev_b32 v6, 12, v3"); k("v_lshl_add_u32 v6, v2, 4, v6")
        for e in range(4):
            k(f"buffer_load_dwordx4 v[{48+4*e}:{51+4*e}], v6, s[{SRD_WO}:{SRD_WO+3}], s{S_WOOFF} offen offset:{e*1024}{OPT.nt_w}")

    def qproj_compute(self):
        k = self.k
        for m in range(8):
            t = 34 + 2 * (m & 3)
            sel = f"s{S_SELLO}" if (m & 1) == 0 else f"s{S_SELHI}"
            q = m >> 1
            k(f"v_perm_b32 v{t}, v{52+q}, v{48+q}, {sel}")
            k(f"v_perm_b32 v{t+1}, v{60+q}, v{56+q}, {sel}")
            if m > 0:
                pm = m - 1; pt = 34 + 2 * (pm & 3)
                k(f"v_mfma_f32_16x16x16_bf16 v[{64+4*pm}:{67+4*pm}], v[{pt}:{pt+1}], v[32:33], 0")
        k("v_and_b32 v8, 1, v2"); k("v_lshlrev_b32 v8, 9, v8")
        k(f"v_mfma_f32_16x16x16_bf16 v[92:95], v[40:41], v[32:33], 0")
        k("v_bfe_u32 v9, v2, 1, 1"); k("v_lshl_add_u32 v8, v9, 8, v8")
        k("v_and_b32 v9, 1, v3"); k("v_lshl_add_u32 v8, v9, 7, v8")
        k(f"s_lshl_b32 s20, s{S_WAVE}, 10"); k("v_add_u32 v8, s20, v8")
        k("s_mov_b32 s20, 0x00050005"); k("s_mov_b32 s21, 0x000a000a")
        k("s_mov_b64 exec, s[20:21]")
        for m in range(8):
            k(f"ds_write2_b32 v8, v{64+4*m}, v{65+4*m} offset0:{m} offset1:{8+m}")
            k(f"ds_write2_b32 v8, v{66+4*m}, v{67+4*m} offset0:{16+m} offset1:{24+m}")
        k("s_mov_b64 exec, -1")
        k("s_waitcnt lgkmcnt(0)")
        self.nonce_ready()
        k(f"s_lshl_b32 s20, s{S_WAVE}, 2"); k(f"v_mov_b32 v8, s20"); k(f"v_mov_b32 v9, 1")
        k("s_mov_b64 exec, 1")
        k(f"ds_write_b32 v8, v9 offset:{L_FLG}")
        k("s_mov_b64 exec, -1")

    def q_reduce(self):
        k = self.k
        k(f"s_mov_b32 s{S_SPIN}, {SPIN_MAX}")
        k("v_and_b32 v6, 7, v1"); k("v_lshlrev_b32 v6, 2, v6")
        k.label("L_fw")
        k(f"ds_read_b32 v8, v6 offset:{L_FLG}")
        k("s_waitcnt lgkmcnt(0)")
        k(f"v_cmp_ne_u32 vcc, 1, v8"); k("s_nop 4")
        k("s_cbranch_vccz L_fok")
        self.spin_check("L_fw")
        k.label("L_fok")
        self.stamp(3)
        k("v_lshlrev_b32 v6, 3, v1")
        for j in range(16):
            k(f"ds_read_b64 v[{64+2*j}:{65+2*j}], v6 offset:{L_QRED + j*512}")
        k(f"v_mov_b32 v117, s{S_TP1}"); k(f"v_mov_b32 v119, s{S_TP2}")
        k(f"s_lshl_b32 s20, s{S_PBR}, 3"); k(f"s_add_u32 s20, s20, s{S_X}"); k("s_lshl_b32 s20, s20, 4")
        k("s_bfe_u32 s21, s2, 0x40003"); k("s_add_u32 s20, s20, s21")
        k(f"s_lshl_b32 s20, s20, 9"); k(f"s_add_u32 s4, s20, {WS_QP}"); k(f"s_add_u32 s20, s4, {WS_LOC}")
        st = 1
        while st < 16:
            if st == 1: k("s_waitcnt lgkmcnt(8)")
            for j in range(0, 16, 2 * st):
                if st == 1 and j == 8: k("s_waitcnt lgkmcnt(0)")
                for i in range(2):
                    k(f"v_add_f32 v{64+2*j+i}, v{64+2*j+i}, v{64+2*(j+st)+i}")
            st *= 2
        k("v_cvt_pk_bf16_f32 v116, v64, v65")
        k("v_mov_b32 v120, v6")
        k("s_nop 0")
        k("v_mov_b32_dpp v118, v116 quad_perm:[1,0,3,2] row_mask:0xf bank_mask:0xf")

    def q_store(self, glob):
        k = self.k
        k("s_mov_b32 exec_lo, 0x55555555"); k("s_mov_b32 exec_hi, 0x55555555")
        if glob: k(f"buffer_store_dwordx4 v[116:119], v120, {SRW}, s4 offen sc1")
        else: k(f"buffer_store_dwordx4 v[116:119], v120, {SRW}, s20 offen")
        k("s_mov_b64 exec, -1")

    def q_operand(self):
        k = self.k
        k("v_and_b32 v6, 3, v2"); k("v_lshlrev_b32 v6, 8, v6"); k("v_lshl_add_u32 v6, v3, 4, v6")
        for j in range(4):
            k(f"ds_read_b128 v[{32+4*j}:{35+4*j}], v6 offset:{L_QLDS + j*64}")

    def qk(self, u, after):
        k = self.k
        for t in range(2):
            s = 8 + u * 8 + t * 4
            k(f"s_waitcnt vmcnt({after + (4 if t == 0 else 0)})")
            for j in range(4):
                a = (u * 8 + t * 4 + j) * 4
                c = "0" if j == 0 else f"v[{s}:{s+3}]"
                k(f"v_mfma_f32_16x16x32_bf16 v[{s}:{s+3}], a[{a}:{a+3}], v[{32+4*j}:{35+4*j}], {c}")

    def xlane_g(self, op, r, t):
        k = self.k
        k(f"v_mov_b32 v{t}, v{r}"); k("s_nop 1"); k(f"v_permlane32_swap_b32 v{r}, v{t}"); k(f"{op} v{r}, v{r}, v{t}")
        k(f"v_mov_b32 v{t}, v{r}"); k("s_nop 1"); k(f"v_permlane16_swap_b32 v{r}, v{t}"); k(f"{op} v{r}, v{r}, v{t}")

    def wave_slot_addr(self, r):
        k = self.k
        k(f"s_lshl_b32 s20, s{S_WAVE}, 4"); k(f"v_lshlrev_b32 v{r}, 2, v1"); k(f"v_add_u32 v{r}, s20, v{r}")

    def smax(self, nreg, vm, vt):
        k = self.k
        self.wave_slot_addr(7)
        if nreg == 0:
            k(f"v_mov_b32 v{vm}, 0xff800000")
        else:
            k(f"v_max3_f32 v{vm}, v8, v9, v10")
            if nreg > 8:
                k(f"v_max3_f32 v{vt}, v11, v12, v13")
                i = 6; alt = 0
                while i + 1 < nreg:
                    r = vm if alt == 0 else vt
                    k(f"v_max3_f32 v{r}, v{r}, v{8+i}, v{9+i}"); i += 2; alt ^= 1
                k(f"v_max_f32 v{vm}, v{vm}, v{vt}")
            else:
                i = 3
                while i + 1 < nreg:
                    k(f"v_max3_f32 v{vm}, v{vm}, v{8+i}, v{9+i}"); i += 2
                if i < nreg: k(f"v_max_f32 v{vm}, v{vm}, v{8+i}")
            self.xlane_g("v_max_f32", vm, vt)
        k("s_mov_b64 exec, 0xf")
        k(f"ds_write_b32 v7, v{vm} offset:{L_MX}")
        k("s_mov_b64 exec, -1")
        k("s_waitcnt lgkmcnt(0)")

    def softmax(self, nreg, vm, vl, vt):
        k = self.k
        k("v_and_b32 v6, 3, v2"); k("v_lshlrev_b32 v6, 2, v6")
        for w in range(8):
            k(f"ds_read_b32 v{vt+w}, v6 offset:{L_MX + w*16}")
        self.wave_slot_addr(7)
        k("s_waitcnt lgkmcnt(0)")
        k(f"v_max3_f32 v{vm}, v{vt}, v{vt+1}, v{vt+2}"); k(f"v_max3_f32 v{vt+3}, v{vt+3}, v{vt+4}, v{vt+5}")
        k(f"v_max3_f32 v{vm}, v{vm}, v{vt+6}, v{vt+7}"); k(f"v_max_f32 v{vm}, v{vm}, v{vt+3}")
        if nreg:
            k(f"v_mul_f32 v{vt}, s{S_SCALE}, v{vm}")
            for i in range(nreg): k(f"v_fma_f32 v{8+i}, v{8+i}, s{S_SCALE}, -v{vt}")
            for i in range(nreg): k(f"v_exp_f32 v{8+i}, v{8+i}")
            k(f"v_pk_add_f32 v[{vt+2}:{vt+3}], v[8:9], v[10:11]")
            if nreg > 4: k(f"v_pk_add_f32 v[{vt+4}:{vt+5}], v[12:13], v[14:15]")
            alt = 0
            for i in range(8, nreg, 2):
                r = vt + 2 + 2 * alt
                k(f"v_pk_add_f32 v[{r}:{r+1}], v[{r}:{r+1}], v[{8+i}:{9+i}]"); alt ^= 1
            k(f"v_pk_add_f32 v[{vt+2}:{vt+3}], v[{vt+2}:{vt+3}], v[{vt+4}:{vt+5}]")
            for w in range(nreg // 2):
                k(f"v_cvt_pk_bf16_f32 v{8+w}, v{8+2*w}, v{9+2*w}")
            k(f"v_add_f32 v{vl}, v{vt+2}, v{vt+3}")
            self.xlane_g("v_add_f32", vl, vt + 1)
        else:
            k(f"v_mov_b32 v{vl}, 0")
        k("s_mov_b64 exec, 0xf")
        k(f"ds_write_b32 v7, v{vl} offset:{L_LS}")
        k("s_mov_b64 exec, -1")
        k("s_waitcnt lgkmcnt(0)")

    def wg_norm(self):
        k = self.k
        k(f"s_lshr_b32 s20, s{S_WAVE}, 1"); k("s_lshl_b32 s20, s20, 2")
        k("v_and_b32 v6, 7, v1"); k("v_lshlrev_b32 v6, 4, v6"); k("v_add_u32 v6, s20, v6")
        k(f"ds_read_b32 v{V_INVL}, v6 offset:{L_LS}")
        k(f"ds_read_b32 v{V_LAM}, v6 offset:{L_MX}")
        self.load_consts()
        k("s_waitcnt lgkmcnt(3)")
        for ctl in ("quad_perm:[1,0,3,2]", "quad_perm:[2,3,0,1]", "row_half_mirror"):
            k(f"v_add_f32_dpp v{V_INVL}, v{V_INVL}, v{V_INVL} {ctl} row_mask:0xf bank_mask:0xf")
            k(f"v_max_f32_dpp v{V_LAM}, v{V_LAM}, v{V_LAM} {ctl} row_mask:0xf bank_mask:0xf")
            k("s_nop 0")
        k(f"v_log_f32 v7, v{V_INVL}"); k(f"v_rcp_f32 v{V_INVL}, v{V_INVL}")
        k(f"s_and_b32 s20, s{S_TA2}, 0xff")
        k(f"v_fma_f32 v{V_LAM}, v{V_LAM}, s{S_SCALE}, v7")
        k(f"v_and_b32 v{V_LAM}, 0xffffff00, v{V_LAM}"); k(f"v_or_b32 v{V_LAM}, s20, v{V_LAM}")

    def pv(self, u, after, first):
        k = self.k
        k(f"s_waitcnt vmcnt({after})")
        base = 64 + u * 32
        pend = None
        for m in range(8):
            t = 32 + 4 * (m & 3)
            sel = f"s{S_SELLO}" if (m & 1) == 0 else f"s{S_SELHI}"
            q = m >> 1
            for w in range(4):
                k(f"v_perm_b32 v{t+w}, v{base + (2*w+1)*4 + q}, v{base + (2*w)*4 + q}, {sel}")
            if pend is not None: k(pend)
            c = "0" if first else f"a[{4*m}:{4*m+3}]"
            pend = f"v_mfma_f32_16x16x32_bf16 a[{4*m}:{4*m+3}], v[{8+4*u}:{11+4*u}], v[{t}:{t+3}], {c}"
        k("s_nop 1")
        k(pend)

    def o_to_lds(self, zero=False):
        k = self.k
        if zero:
            for i in range(4): k(f"v_mov_b32 v{32+i}, 0")
        k("s_waitcnt lgkmcnt(0)")
        k("s_mov_b64 exec, 0xffff")
        for m in range(8):
            src = "v[32:35]" if zero else f"a[{4*m}:{4*m+3}]"
            if m == 7 and not zero: k("s_nop 1")
            k(f"ds_write_b128 v{V_ORW}, {src} offset:{L_ORED + m*16}")
        k("s_mov_b64 exec, -1")
        k("s_waitcnt lgkmcnt(0)")

    def spin_check(self, retry_label):
        k = self.k
        k(f"s_sub_u32 s{S_SPIN}, s{S_SPIN}, 1")
        k(f"s_cmp_lg_u32 s{S_SPIN}, 0")
        k(f"s_cbranch_scc1 {retry_label}")
        k("s_branch L_end")

    def tagacc(self, acc, regs, t1, t2):
        k = self.k
        first = True
        for r in regs:
            for off, t in ((1, t1), (3, t2)):
                if first:
                    k(f"v_xor_b32 v{acc}, s{t}, v{r+off}"); first = False
                else:
                    k(f"v_bitop3_b32 v{acc}, v{r+off}, s{t}, v{acc} bitop3:0xbe")

    def q_round(self, tag):
        k = self.k
        k(f"s_and_b32 s20, s{S_SPIN}, {QMASK}"); k("s_cmp_eq_u32 s20, 0"); k(f"s_cselect_b32 s20, {WS_LOC}, 0")
        k("s_sub_u32 s21, s23, s20"); k("s_sub_u32 s20, s22, s20")
        k(f"buffer_load_dwordx4 v[96:99], v6, {SRW}, s21 offen sc1")
        k(f"buffer_load_dwordx4 v[100:103], v6, {SRW}, s21 offen offset:512 sc1")
        k(f"buffer_load_dwordx4 v[104:107], v6, {SRW}, s20 offen sc1")
        k(f"buffer_load_dwordx4 v[108:111], v6, {SRW}, s20 offen offset:512 sc1")
        k("s_waitcnt vmcnt(0)")
        self.tagacc(8, [96, 100, 104, 108], S_TA1, S_TA2)
        k("v_cmp_ne_u32 vcc, 0, v8"); k("s_nop 4")

    def helper_qpoll(self):
        k = self.k
        k(f"s_lshl_b32 s21, s{S_ABR}, 3"); k(f"s_add_u32 s20, s{S_X}, s21")
        k(f"s_lshl_b32 s23, s20, 13"); k(f"s_lshr_b32 s21, s{S_PAIR}, 3"); k("s_lshl_b32 s21, s21, 8")
        k("s_add_u32 s23, s23, s21"); k(f"s_add_u32 s23, s23, {WS_QP + WS_LOC}")
        k("s_add_u32 s22, s23, 4096")
        k("v_lshrrev_b32 v6, 4, v1"); k("v_lshlrev_b32 v6, 10, v6"); k("v_lshl_add_u32 v6, v2, 4, v6")
        k(f"s_mov_b32 s{S_SPIN}, {SPIN_MAX}")
        self.q_round("a")
        self.stamp(4)
        k("s_cbranch_vccz L_qearly")
        k(f"s_sub_u32 s{S_SPIN}, s{S_SPIN}, 1")
        self.q_round("b")
        k("s_cbranch_vccz L_qearly")
        self.q_store(True)
        k(f"s_sub_u32 s{S_SPIN}, s{S_SPIN}, 1")
        k.label("L_qd")
        self.q_round("c")
        k("s_cbranch_vccz L_qdok")
        self.spin_check("L_qd")
        k.label("L_qearly")
        self.q_store(True)
        k.label("L_qdok")
        self.stamp(5)
        if OPT.stamps: k(f"s_sub_u32 s{S_STAMP+2*13}, {SPIN_MAX}, s{S_SPIN}")
        k("s_mov_b32 s20, 0xffff0000")
        for ip in range(2):
            a = 96 + ip * 8; b = a + 4
            for d in (0, 2):
                k(f"v_lshlrev_b32 v8, 16, v{a+d}"); k(f"v_lshlrev_b32 v9, 16, v{b+d}")
                k(f"v_and_b32 v10, s20, v{a+d}"); k(f"v_and_b32 v11, s20, v{b+d}")
                k("v_add_f32 v8, v8, v9"); k("v_add_f32 v10, v10, v11")
                k(f"v_cvt_pk_bf16_f32 v{112 + ip*2 + d//2}, v8, v10")
        k("v_lshlrev_b32 v6, 3, v1")
        k(f"ds_write_b64 v6, v[112:113] offset:{L_QLDS}")
        k(f"ds_write_b64 v6, v[114:115] offset:{L_QLDS + 512}")
        k("s_waitcnt lgkmcnt(0)")

    def publish_po(self):
        k = self.k
        for w in range(8):
            k(f"ds_read_b32 v{8+w}, v{V_ORD} offset:{L_ORED + w*2048}")
        k(f"v_mov_b32 v18, v{V_LAM}"); k(f"v_mov_b32 v19, s{S_TA1}")
        k(f"s_add_u32 s22, s{S_POOFF}, {WS_LOC}")
        k("s_waitcnt lgkmcnt(4)")
        k("v_add_f32 v8, v8, v9"); k("v_add_f32 v10, v10, v11")
        k("s_waitcnt lgkmcnt(0)")
        k("v_add_f32 v12, v12, v13"); k("v_add_f32 v14, v14, v15")
        k("v_add_f32 v8, v8, v10"); k("v_add_f32 v12, v12, v14"); k("v_add_f32 v8, v8, v12")
        k(f"v_mul_f32 v8, v8, v{V_INVL}")
        k("s_mov_b32 s20, 0x11111111"); k("s_mov_b32 s21, 0x11111111")
        k("v_mov_b32_dpp v9, v8 quad_perm:[1,0,3,2] row_mask:0xf bank_mask:0xf")
        k("v_cvt_pk_bf16_f32 v16, v8, v9")
        k("s_nop 1")
        k("v_mov_b32_dpp v17, v16 quad_perm:[2,3,0,1] row_mask:0xf bank_mask:0xf")
        k("s_mov_b64 exec, s[20:21]")
        k(f"buffer_store_dwordx4 v[16:19], v{V_POV}, {SRW}, s22 offen")
        k(f"buffer_store_dwordx4 v[16:19], v{V_POV}, {SRW}, s{S_POOFF} offen sc1")
        k("s_mov_b64 exec, -1")

    def t2_loads(self, so=None):
        k = self.k
        so = so or f"s{S_T2OFF}"
        k(f"buffer_load_dwordx4 v[96:99], v{V_T20}, {SRW}, {so} offen sc1")
        k(f"buffer_load_dwordx4 v[100:103], v{V_T21}, {SRW}, {so} offen sc1")

    def wo_exchange(self):
        k = self.k
        for m in range(8):
            t = 32 + 2 * m
            sel = f"s{S_SELLO}" if (m & 1) == 0 else f"s{S_SELHI}"
            q = m >> 1
            k(f"v_perm_b32 v{t}, v{52+q}, v{48+q}, {sel}")
            k(f"v_perm_b32 v{t+1}, v{60+q}, v{56+q}, {sel}")
            k(f"ds_write_b64 v{V_WXW}, v[{32+2*m}:{33+2*m}] offset:{L_WX + m*16}")
        k("s_waitcnt lgkmcnt(0)")

    def t2_t3(self):
        k = self.k
        for j in range(4):
            k(f"ds_read_b128 v[{64+4*j}:{67+4*j}], v{V_WXR} offset:{L_WX + j*1024}")
        k(f"v_mov_b32 v13, s{S_TP1}"); k(f"v_mov_b32 v15, s{S_TP2}")
        k(f"s_mov_b32 s{S_SPIN}, {SPIN_MAX}")
        self.stamp(10)
        k("s_branch L_t2w")
        k.label("L_t2")
        k(f"s_and_b32 s20, s{S_SPIN}, {TMASK}"); k("s_cmp_eq_u32 s20, 0"); k(f"s_cselect_b32 s20, {WS_LOC}, 0")
        k(f"s_sub_u32 s20, s{S_T2OFF}, s20")
        self.t2_loads("s20")
        k.label("L_t2w")
        k("s_waitcnt vmcnt(0)")
        k("v_lshlrev_b32 v8, 24, v98"); k("v_lshlrev_b32 v9, 24, v102")
        k(f"v_xor_b32 v8, s{S_TB}, v8"); k(f"v_xor_b32 v9, s{S_TB}, v9")
        k(f"v_bitop3_b32 v8, v99, s{S_TP1}, v8 bitop3:0xbe"); k(f"v_bitop3_b32 v9, v103, s{S_TP1}, v9 bitop3:0xbe")
        k("v_cmp_ne_u32 vcc, 0, v8"); k("v_cmp_ne_u32 s[20:21], 0, v9")
        k("v_mov_b32 v10, 0xff800000")
        k("s_nop 2")
        k("s_and_b64 vcc, vcc, s[46:47]"); k("s_and_b64 s[20:21], s[20:21], s[14:15]")
        k("s_or_b64 vcc, vcc, s[20:21]")
        k("s_cbranch_scc0 L_t2ok")
        self.spin_check("L_t2")
        k.label("L_t2ok")
        self.stamp(11)
        if OPT.stamps: k(f"s_sub_u32 s{S_STAMP+2*15}, {SPIN_MAX}, s{S_SPIN}")
        k("s_mov_b32 s20, 0xffff0000")
        k("v_cndmask_b32 v98, v10, v98, s[46:47]"); k("v_cndmask_b32 v102, v10, v102, s[14:15]")
        k("v_max_f32 v8, v98, v102")
        k("v_lshlrev_b32 v104, 16, v96"); k("v_and_b32 v105, s20, v96")
        k("v_max_f32_dpp v8, v8, v8 quad_perm:[1,0,3,2] row_mask:0xf bank_mask:0xf")
        k("v_lshlrev_b32 v106, 16, v97"); k("v_and_b32 v107, s20, v97")
        k("v_max_f32_dpp v8, v8, v8 quad_perm:[2,3,0,1] row_mask:0xf bank_mask:0xf")
        k("v_lshlrev_b32 v108, 16, v100"); k("v_and_b32 v109, s20, v100")
        k("v_max_f32_dpp v8, v8, v8 row_ror:8 row_mask:0xf bank_mask:0xf")
        k("v_lshlrev_b32 v110, 16, v101"); k("v_and_b32 v111, s20, v101")
        k("v_sub_f32 v98, v98, v8"); k("v_sub_f32 v102, v102, v8")
        k("v_exp_f32 v98, v98"); k("v_exp_f32 v102, v102"); k("s_nop 0")
        k("v_add_f32 v114, v98, v102")
        p0 = (104, 105, 106, 107); p1 = (108, 109, 110, 111)
        for i in range(4): k(f"v_mul_f32 v{p0[i]}, v98, v{p0[i]}")
        for i in range(4): k(f"v_fma_f32 v{p0[i]}, v102, v{p1[i]}, v{p0[i]}")
        for ctl in ("quad_perm:[1,0,3,2]", "quad_perm:[2,3,0,1]", "row_ror:8"):
            for r in (114,) + p0:
                k(f"v_add_f32_dpp v{r}, v{r}, v{r} {ctl} row_mask:0xf bank_mask:0xf")
        k("v_rcp_f32 v114, v114"); k("s_mov_b32 s20, 0x00110011")
        for r in p0: k(f"v_mul_f32 v{r}, v114, v{r}")
        k("v_cvt_pk_bf16_f32 v96, v104, v105"); k("v_cvt_pk_bf16_f32 v97, v106, v107")
        k("s_mov_b32 exec_lo, s20"); k("s_mov_b32 exec_hi, s20")
        k(f"ds_write_b64 v{V_OLW}, v[96:97] offset:{L_OLDS}")
        k("s_mov_b64 exec, -1")
        k("s_waitcnt lgkmcnt(0)")
        k("s_barrier")
        for j in range(4):
            k(f"ds_read_b128 v[{80+4*j}:{83+4*j}], v{V_OLR} offset:{L_OLDS + j*64}")
        for j in range(4):
            k(f"s_waitcnt lgkmcnt({3-j})")
            c = "0" if j == 0 else "v[8:11]"
            k(f"v_mfma_f32_16x16x32_bf16 v[8:11], v[{80+4*j}:{83+4*j}], v[{64+4*j}:{67+4*j}], {c}")
        k("s_mov_b32 s20, 0x55555555"); k("s_mov_b32 s21, 0")
        k("s_nop 5")
        k("v_mov_b32 v12, v8")
        k("v_mov_b32_dpp v14, v8 quad_perm:[1,0,3,2] row_mask:0xf bank_mask:0xf")
        k("s_mov_b64 exec, s[20:21]")
        k(f"buffer_store_dwordx4 v[12:15], v{V_OPV}, {SRW}, s{S_OPOFF} offen sc1")
        k("s_mov_b64 exec, -1")
        self.stamp(12)

    def t4_consts(self):
        k = self.k
        k(f"s_lshr_b32 s21, s{S_X}, 1"); k(f"s_lshl_b32 s22, s{S_PBR}, 2"); k("s_add_u32 s21, s21, s22")
        k(f"s_and_b32 s22, s{S_X}, 1")
        k("s_lshl_b32 s23, s21, 16"); k("s_lshl_b32 s4, s22, 10"); k("s_add_u32 s23, s23, s4")
        k(f"s_lshl_b32 s4, s{S_WAVE}, 7"); k("s_add_u32 s23, s23, s4"); k(f"s_add_u32 s69, s23, {WS_OP}")
        k("s_add_u32 s3, s69, 16384"); k("s_add_u32 s4, s69, 32768"); k("s_add_u32 s5, s69, 49152")
        k("v_lshrrev_b32 v122, 3, v1"); k("v_lshlrev_b32 v122, 11, v122"); k("v_and_b32 v123, 7, v1"); k("v_lshl_add_u32 v122, v123, 4, v122")
        k("s_lshl_b32 s22, s22, 11"); k("s_lshl_b32 s21, s21, 8"); k("s_add_u32 s22, s22, s21")
        k(f"s_lshl_b32 s21, s{S_WAVE}, 5"); k("s_add_u32 s10, s22, s21")
        k("v_lshlrev_b32 v123, 2, v1")

    def t4_issue(self, base):
        k = self.k
        for i, so in enumerate(("s69", "s3", "s4", "s5")):
            k(f"buffer_load_dwordx4 v[{base+4*i}:{base+3+4*i}], v122, {SRW}, {so} offen sc1")

    def t4(self):
        k = self.k
        n = OPT.t4sets
        bases = [32 + 16 * i for i in range(n)]
        k(f"s_mov_b32 s{S_SPIN}, {SPIN_MAX}")
        for b in bases: self.t4_issue(b)
        k.label("L_t4")
        for i, b in enumerate(bases):
            k(f"s_waitcnt vmcnt({4*(n-1)})")
            self.tagacc(8, [b, b + 4, b + 8, b + 12], S_TP1, S_TP2)
            k("v_cmp_ne_u32 vcc, 0, v8"); k("s_nop 4")
            k(f"s_cbranch_vccz L_t4ok{i}")
            self.t4_issue(b)
        self.spin_check("L_t4")
        for i, b in enumerate(bases):
            k.label(f"L_t4ok{i}")
            k(f"v_add_f32 v8, v{b}, v{b+4}"); k(f"v_add_f32 v9, v{b+2}, v{b+6}"); k(f"v_add_f32 v10, v{b+8}, v{b+12}"); k(f"v_add_f32 v11, v{b+10}, v{b+14}")
            if i < n - 1: k("s_branch L_t4sum")
        k.label("L_t4sum")
        self.stamp(13)
        k("v_add_f32 v8, v8, v10"); k("v_add_f32 v9, v9, v11")
        k("s_nop 1")
        k("v_add_f32_dpp v8, v8, v8 row_ror:8 row_mask:0xf bank_mask:0xf"); k("v_add_f32_dpp v9, v9, v9 row_ror:8 row_mask:0xf bank_mask:0xf")
        for sw in ("v_permlane16_swap_b32", "v_permlane32_swap_b32"):
            k("v_mov_b32 v10, v8"); k("v_mov_b32 v11, v9"); k("s_nop 1")
            k(f"{sw} v8, v10"); k(f"{sw} v9, v11")
            k("v_add_f32 v8, v8, v10"); k("v_add_f32 v9, v9, v11")
        k("v_cvt_pk_bf16_f32 v8, v8, v9")
        k("s_mov_b64 exec, 0xff")
        k(f"buffer_store_dword v8, v123, s[{SRD_OUT}:{SRD_OUT+3}], s10 offen")
        k("s_mov_b64 exec, -1")

    def dump_stamps(self, n=16):
        if not OPT.stamps: return
        k = self.k
        k("s_waitcnt lgkmcnt(0)")
        k("v_mov_b32 v8, 0")
        for i in range(n):
            k(f"v_writelane_b32 v8, s{S_STAMP+2*i}, {i}")
        k(f"s_lshl_b32 s20, s2, 3"); k(f"s_add_u32 s20, s20, s{S_WAVE}"); k("s_lshl_b32 s20, s20, 6"); k(f"s_add_u32 s20, s20, {WS_ST}")
        k("v_lshlrev_b32 v9, 2, v1")
        k("s_mov_b64 exec, 0xffff")
        k(f"buffer_store_dword v8, v9, {SRW}, s20 offen")
        k("s_mov_b64 exec, -1")

    def build(self):
        k = self.k
        if OPT.stamps:
            for i in range(16):
                k(f"s_mov_b32 s{S_STAMP+2*i}, 0")
        self.prologue()
        k("s_barrier")
        self.setup2()
        k("v_mov_b32 v122, 0"); k("v_mov_b32 v123, 0")
        k(f"s_cmp_lg_u32 s{S_SPARE}, 0"); k("s_cbranch_scc1 L_light")
        k(f"s_cmp_eq_u32 s{S_WAVE}, 7"); k("s_cbranch_scc1 L_light")
        k("s_setprio 2")
        npre = 4 * OPT.pre_k
        if OPT.pre_k: self.kload(0, tuple(range(OPT.pre_k)))
        self.setup3()
        k(f"s_waitcnt vmcnt({npre})")
        self.stamp(2)
        self.qproj_compute()
        self.stamp(3)
        if OPT.pre_k < 2: self.kload(0, tuple(range(OPT.pre_k, 2)))
        self.kload(1); self.kload(2)
        k("s_setprio 1")
        self.vload(0); self.vload(1)
        self.stamp(4)
        k("s_barrier")
        self.stamp(5)
        self.q_operand()
        k("s_waitcnt lgkmcnt(0)")
        self.qk(0, 32); self.qk(1, 24); self.qk(2, 16)
        k("s_nop 7")
        self.stamp(6)
        self.smax(24, 50, 51)
        k("s_barrier")
        self.stamp(7)
        self.vload(2)
        self.softmax(24, 44, 45, 32)
        k("s_barrier")
        self.wg_norm()
        k("s_setprio 0")
        self.wo_loads()
        self.stamp(8)
        self.pv(0, 20, True); self.pv(1, 12, False); self.pv(2, 4, False)
        k("s_nop 5")
        self.o_to_lds()
        k("s_branch L_D")
        k.label("L_light")
        self.setup3()
        if OPT.touch:
            k("v_mov_b32 v8, 0")
            k("s_mov_b64 exec, 1")
            k(f"s_cmp_lg_u32 s{S_SPARE}, 0"); k("s_cbranch_scc1 L_nov")
            k(f"buffer_load_dword v9, v8, s[{SRD_V}:{SRD_V+3}], s{S_KVOFF} offen")
            k.label("L_nov")
            k(f"buffer_load_dword v10, v8, s[{SRD_WO}:{SRD_WO+3}], s{S_WOOFF} offen")
            k(f"buffer_load_dword v11, v8, {SRW}, s{S_OPOFF} offen")
            k(f"buffer_load_dword v12, v8, s[{SRD_OUT}:{SRD_OUT+3}], 0 offen")
            k("s_mov_b64 exec, -1")
        k("s_waitcnt vmcnt(0)")
        self.stamp(2)
        self.qproj_compute()
        k(f"s_cmp_lg_u32 s{S_WAVE}, 7"); k("s_cbranch_scc1 L_spare_rest")
        self.q_reduce()
        self.q_store(False)
        k(f"s_cmp_lg_u32 s{S_SPARE}, 0"); k("s_cbranch_scc1 L_spare_h")
        k(f"s_cmp_lg_u32 s{S_THIRD}, 0"); k("s_cbranch_scc1 L_h_nok")
        self.kload(0)
        k.label("L_h_nok")
        self.helper_qpoll()
        k("s_barrier")
        self.stamp(6)
        k(f"s_cmp_lg_u32 s{S_THIRD}, 0"); k("s_cbranch_scc1 L_h_nounit")
        self.vload(0)
        self.q_operand()
        k("s_waitcnt lgkmcnt(0)")
        self.qk(0, 63 - 4)
        k("s_nop 7")
        self.smax(8, 50, 51)
        k("s_barrier")
        self.softmax(8, 44, 45, 32)
        k("s_barrier")
        self.wg_norm()
        self.wo_loads()
        self.pv(0, 4, True)
        k("s_nop 5")
        self.o_to_lds()
        k("s_branch L_D")
        k.label("L_h_nounit")
        self.smax(0, 50, 51)
        k("s_barrier")
        self.softmax(0, 44, 45, 32)
        k("s_barrier")
        self.wg_norm()
        self.wo_loads()
        self.o_to_lds(zero=True)
        k.label("L_D")
        k("s_barrier")
        self.stamp(9)
        self.publish_po()
        self.t2_loads()
        k("s_waitcnt vmcnt(4)")
        k("s_branch L_join")
        k.label("L_spare_h")
        self.q_store(True)
        k.label("L_spare_rest")
        self.wo_loads()
        self.load_consts()
        self.t4_consts()
        k("s_waitcnt lgkmcnt(0)")
        self.t2_loads()
        k("s_waitcnt vmcnt(2)")
        k.label("L_join")
        self.wo_exchange()
        k("s_barrier")
        self.t2_t3()
        k(f"s_cmp_eq_u32 s{S_SPARE}, 0"); k("s_cbranch_scc1 L_fin")
        self.t4()
        self.stamp(14)
        k(f"s_or_b32 s20, s{S_X}, s{S_WAVE}"); k("s_cmp_lg_u32 s20, 0"); k("s_cbranch_scc1 L_fin")
        k(f"v_mov_b32 v8, s{S_TP1}"); k("v_mov_b32 v9, 0"); k(f"s_lshl_b32 s20, s{S_PBR}, 7")
        k("s_mov_b64 exec, 1")
        k(f"buffer_store_dword v8, v9, {SRW}, s20 offen")
        k("s_mov_b64 exec, -1")
        k.label("L_fin")
        if OPT.dbg:
            k(f"s_cmp_lg_u32 s{S_WAVE}, 0"); k("s_cbranch_scc1 L_end")
            k("s_lshr_b32 s3, s2, 3")
            k("s_memrealtime s[72:73]")
            k("s_load_dwordx2 s[20:21], s[0:1], 88")
            k("s_waitcnt lgkmcnt(0)")
            srd(k, 76, 20, 21, 256)
            k("s_cmp_eq_u32 s3, 0"); k("s_cselect_b32 s4, s70, s72"); k("s_cselect_b32 s5, 0, 32")
            k("s_cmp_eq_u32 s3, 0"); k("s_cbranch_scc1 L_dbgw")
            k("s_cmp_eq_u32 s3, 31"); k("s_cbranch_scc0 L_end")
            k.label("L_dbgw")
            k(f"s_lshl_b32 s10, s{S_X}, 2"); k("s_add_u32 s5, s5, s10")
            k("v_mov_b32 v8, s4"); k("v_mov_b32 v9, 0")
            k("s_mov_b64 exec, 1")
            k("buffer_store_dword v8, v9, s[76:79], s5 offen")
            k("s_mov_b64 exec, -1")
        self.dump_stamps()
        k.label("L_end")
        k("s_endpgm")
        return k.text()

def build():
    body = Gen().build()
    name = NAME + "_kernel"
    hdr = f"""; @launch grid=(256,1,1) block=(512,1,1) lds={LDS_SIZE}
.amdgcn_target "amdgcn-amd-amdhsa--gfx950"
.text
.globl {name}
.p2align 8
.type {name},@function
{name}:
"""
    kd = f""".section .rodata,"a"
.p2align 6
.amdhsa_kernel {name}
  .amdhsa_next_free_vgpr 256
  .amdhsa_next_free_sgpr 102
  .amdhsa_accum_offset 160
  .amdhsa_group_segment_fixed_size 0
  .amdhsa_kernarg_size 104
  .amdhsa_user_sgpr_count 2
  .amdhsa_user_sgpr_kernarg_segment_ptr 1
  .amdhsa_system_sgpr_workgroup_id_x 1
.end_amdhsa_kernel
"""
    return hdr + body + kd

if __name__ == "__main__":
    for a in sys.argv[2:]:
        if a == "stamps": OPT.stamps = True
        if a == "nont": OPT.nt_kv = ""; OPT.nt_w = ""
        if a.startswith("prek"): OPT.pre_k = int(a[4:])
        if a == "touch": OPT.touch = 1
        if a == "dbg": OPT.dbg = 1
        if a.startswith("t4s"): OPT.t4sets = int(a[3:])
    open(sys.argv[1], "w").write(build())
```

```python
import sys, struct
NAME = "concat_heads__sliding_block_cached__gqa_block_cached__decode"

class K:
    def __init__(self): self.L = []
    def __call__(self, s): self.L.append("    " + s)
    def label(self, s): self.L.append(s + ":")
    def text(self): return "\n".join(self.L) + "\n"

def f32bits(x): return struct.unpack("<I", struct.pack("<f", x))[0]

WS_EP = 0x0
WS_QP = 0x2000
WS_PO = 0x22000
WS_OP = 0x9A000
WS_LOC = 0x120000
WS_ST = 0x1C0000
WS_SIZE = 0x1E0000
QMASK = 3
TMASK = 15

L_QRED = 0x0000
L_QLDS = 0x2000
L_MX = 0x2400
L_LS = 0x2480
L_FLG = 0x24C0 + 0x40
L_OLDS = 0x2600
L_ORED = 0x2800
L_WX = 0x6800
WX_STRIDE = 4128
L_CST = L_WX + 8 * WX_STRIDE + 0x100
L_CST = (L_CST + 255) & ~255
LDS_SIZE = L_CST + 3 * 8192

SEL_LO = 0x05040100
SEL_HI = 0x07060302
TAGX = 0x5bd1e995
SCALE_LOG2E = (128 ** -0.5) * 1.4426950408889634
SPIN_MAX = 100015

class Opt:
    nt_kv = " nt"
    nt_w = " nt"
    stamps = False
    pre_k = 0
    t4sets = 1
    touch = 0
    stream = 0
    kcontig = 0
    t2late = 0
    kfirst = 0
    order = 0
    dbg = 0
OPT = Opt()

S_X = 8; S_SPARE = 9; S_AW = 11; S_WAVE = 12; S_KVOFF = 13
S_TP1 = 16; S_TP2 = 17; S_TA1 = 18; S_TA2 = 19
SRD_K = 24; SRD_V = 28; SRD_WS = 32; SRD_WQ = 36
S_SELLO = 40; S_SELHI = 41; S_SCALE = 42; S_IP = 43
S_T2OFF = 44; S_TB = 45
SRD_WO = 48; SRD_X = 52; SRD_OUT = 56
S_PBR = 60; S_H = 61; S_CG = 62; S_PAIR = 63; S_ABR = 64; S_SPIN = 65; S_THIRD = 66
S_POOFF = 67; S_OPOFF = 6; S_WOOFF = 7
S_STAMP = 70
SRW = f"s[{SRD_WS}:{SRD_WS+3}]"
GS = [36, 37, 38, 39, 52, 53, 54, 55]
V_ORD = 20; V_POV = 21; V_WXR = 22; V_OLW = 23; V_T20 = 24; V_T21 = 25; V_OLR = 26; V_WXW = 27; V_ORW = 28; V_OPV = 29; V_INVL = 30; V_LAM = 31

def srd(k, d, lo, hi, size):
    k(f"s_mov_b32 s{d}, s{lo}")
    k(f"s_and_b32 s{d+1}, s{hi}, 0xffff")
    k(f"s_mov_b32 s{d+2}, {size}")
    k(f"s_mov_b32 s{d+3}, 0x20000")

class Gen:
    def __init__(self):
        self.k = K()
    def stamp(self, idx):
        if OPT.stamps:
            self.k(f"s_memrealtime s[{S_STAMP+2*idx}:{S_STAMP+2*idx+1}]")

    def prologue(self):
        k = self.k
        k("s_cmp_ge_u32 s2, 256"); k("s_cbranch_scc1 L_end")
        self.stamp(0)
        if OPT.dbg: k("s_memrealtime s[70:71]")
        k("s_lshr_b32 s3, s2, 3"); k(f"s_lshr_b32 s{S_PBR}, s3, 4")
        k(f"s_mul_i32 s4, s{S_PBR}, 40"); k("s_add_u32 s6, s0, s4"); k("s_addc_u32 s7, s1, 0")
        k("s_load_dwordx2 s[20:21], s[6:7], 0")
        k("s_load_dwordx4 s[44:47], s[6:7], 24")
        k(f"s_sub_u32 s{S_IP}, s3, s{S_PBR}")
        k(f"s_cmp_ge_u32 s{S_IP}, 6"); k(f"s_cselect_b32 s{S_ABR}, 1, 0")
        k(f"s_mul_i32 s4, s{S_ABR}, 40"); k("s_add_u32 s8, s0, s4"); k("s_addc_u32 s9, s1, 0")
        k("s_load_dwordx4 s[16:19], s[8:9], 8")
        k("s_load_dwordx2 s[14:15], s[0:1], 96")
        k("s_load_dwordx2 s[22:23], s[0:1], 80")
        k("v_and_b32 v1, 63, v0"); k("v_lshrrev_b32 v2, 6, v0"); k("v_lshrrev_b32 v3, 4, v1")
        k(f"v_readfirstlane_b32 s{S_WAVE}, v2")
        k("v_lshlrev_b32 v9, 2, v2"); k("v_mov_b32 v10, 0")
        k(f"ds_write2_b32 v9, v10, v10 offset0:{L_FLG//4 % 256} offset1:{(L_FLG//4 + 1) % 256}") if False else None
        k(f"ds_write_b32 v9, v10 offset:{L_FLG}")
        k(f"ds_write_b32 v10, v10 offset:{L_FLG + 32}")
        k("v_and_b32 v2, 15, v1")
        k(f"s_and_b32 s{S_X}, s2, 7")
        k("v_lshlrev_b32 v6, 16, v3"); k("v_lshrrev_b32 v7, 3, v2"); k("v_lshl_add_u32 v6, v7, 15, v6")
        k("v_and_b32 v7, 7, v2"); k("v_lshl_add_u32 v6, v7, 4, v6")
        k("v_bfe_u32 v7, v2, 1, 1"); k("v_lshlrev_b32 v7, 10, v7"); k("v_lshl_add_u32 v7, v3, 4, v7")
        k("v_and_b32 v8, 1, v2"); k("v_lshl_add_u32 v7, v8, 3, v7")
        k("s_and_b32 s4, s3, 1"); k("s_lshl_b32 s4, s4, 8"); k(f"s_lshl_b32 s5, s{S_WAVE}, 5"); k("s_add_u32 s4, s4, s5")
        k("s_lshl_b32 s5, s4, 1")
        k("s_lshl_b32 s10, s4, 13"); k("s_bfe_u32 s4, s3, 0x30001")
        k("s_setprio 3")
        k("s_waitcnt lgkmcnt(0)")
        srd(k, SRD_X, 20, 21, 2048)
        srd(k, SRD_WQ, 44, 45, 4 << 20)
        k(f"s_lshl_b32 s20, s{S_X}, 3"); k("s_add_u32 s4, s4, s20"); k("s_lshl_b32 s4, s4, 7"); k("s_add_u32 s10, s10, s4")
        k(f"buffer_load_dwordx2 v[32:33], v7, s[{SRD_X}:{SRD_X+3}], s5 offen")
        for e in range(4):
            k(f"buffer_load_dwordx4 v[{48+4*e}:{51+4*e}], v6, s[{SRD_WQ}:{SRD_WQ+3}], s10 offen{OPT.nt_w}")
            if e < 3: k("s_add_u32 s10, s10, 8192")
        self.stamp(1)

    def setup2(self):
        k = self.k
        k(f"s_load_dword s68, s[14:15], {WS_EP}")
        k(f"s_load_dword s69, s[14:15], {WS_EP + 128}")
        srd(k, SRD_K, 16, 17, 32 << 20)
        srd(k, SRD_V, 18, 19, 32 << 20)
        srd(k, SRD_WS, 14, 15, WS_SIZE)
        k(f"s_mul_hi_u32 s3, s{S_IP}, 0x55555556")
        k(f"s_mul_i32 s4, s3, 3"); k(f"s_sub_u32 s{S_THIRD}, s{S_IP}, s4")
        k("s_sub_u32 s5, s3, 2"); k("s_lshr_b32 s10, s5, 2"); k("s_and_b32 s5, s5, 3"); k("s_lshl_b32 s5, s5, 11")
        k("s_cmp_ge_u32 s3, 2")
        k(f"s_cselect_b32 s10, s10, s3"); k("s_cselect_b32 s5, s5, 6144")
        k(f"s_lshl_b32 s10, s10, 3"); k(f"s_add_u32 s{S_PAIR}, s10, s{S_X}")
        k(f"s_mul_i32 s10, s{S_THIRD}, 21"); k(f"s_cmp_gt_u32 s{S_THIRD}, 0"); k("s_addc_u32 s10, s10, 0")
        k(f"s_mul_i32 s4, s{S_WAVE}, 3"); k("s_add_u32 s10, s10, s4")
        k("s_lshl_b32 s10, s10, 5"); k("s_add_u32 s10, s10, s5"); k("s_lshl_b32 s10, s10, 8")
        k(f"s_lshl_b32 s{S_KVOFF}, s{S_PAIR}, 21"); k(f"s_add_u32 s{S_KVOFF}, s{S_KVOFF}, s10")
        k("v_and_b32 v4, 3, v2"); k("v_lshlrev_b32 v4, 2, v4"); k("v_lshrrev_b32 v5, 2, v2"); k("v_add_u32 v4, v4, v5")
        k("v_lshlrev_b32 v4, 8, v4"); k("v_lshl_add_u32 v4, v3, 4, v4")
        k("v_lshlrev_b32 v5, 4, v1")
        k("s_lshr_b32 s3, s2, 3"); k("s_and_b32 s3, s3, 15"); k("s_cmp_eq_u32 s3, 15"); k(f"s_cselect_b32 s{S_SPARE}, 1, 0")

    def setup3(self):
        k = self.k
        srd(k, SRD_WO, 46, 47, 4 << 20)
        srd(k, SRD_OUT, 22, 23, 4096)
        k(f"s_mov_b32 s{S_SELLO}, 0x{SEL_LO:x}"); k(f"s_mov_b32 s{S_SELHI}, 0x{SEL_HI:x}")
        k(f"s_mov_b32 s{S_SCALE}, 0x{f32bits(SCALE_LOG2E):x}")
        k(f"s_lshr_b32 s{S_H}, s2, 5"); k(f"s_and_b32 s{S_H}, s{S_H}, 3"); k(f"s_lshl_b32 s4, s{S_X}, 2"); k(f"s_add_u32 s{S_H}, s{S_H}, s4")
        k(f"s_bfe_u32 s{S_CG}, s2, 0x20003")
        k(f"s_mul_i32 s{S_AW}, s{S_X}, 30"); k(f"s_add_u32 s{S_AW}, s{S_AW}, s{S_IP}")
        k(f"s_lshl_b32 s{S_POOFF}, s{S_AW}, 11"); k(f"s_add_u32 s{S_POOFF}, s{S_POOFF}, {WS_PO}")
        k(f"s_lshl_b32 s20, s{S_H}, 7"); k(f"s_lshl_b32 s21, s{S_WAVE}, 4"); k("s_add_u32 s20, s20, s21")
        k("s_lshl_b32 s20, s20, 10"); k(f"s_lshl_b32 s21, s{S_CG}, 8"); k(f"s_add_u32 s{S_WOOFF}, s20, s21")
        k(f"s_lshl_b32 s21, s{S_PBR}, 2"); k(f"s_add_u32 s21, s21, s{S_CG}"); k("s_lshl_b32 s21, s21, 5"); k(f"s_add_u32 s21, s21, s{S_H}")
        k("s_lshl_b32 s21, s21, 11"); k(f"s_lshl_b32 s20, s{S_WAVE}, 7"); k("s_add_u32 s21, s21, s20"); k(f"s_add_u32 s{S_OPOFF}, s21, {WS_OP}")
        k(f"s_and_b32 s21, s{S_H}, 3"); k(f"s_lshl_b32 s{S_T2OFF}, s21, 9"); k(f"s_lshl_b32 s20, s{S_WAVE}, 6")
        k(f"s_add_u32 s{S_T2OFF}, s{S_T2OFF}, s20"); k(f"s_add_u32 s{S_T2OFF}, s{S_T2OFF}, {WS_PO + WS_LOC}")
        a = 8
        ORD, POV, WXR, OLW, T20, T21, OLR, WXW, ORW, OPV = range(a, a + 10)
        k(f"v_and_b32 v{ORD}, 127, v0"); k(f"v_lshlrev_b32 v{ORD}, 4, v{ORD}"); k(f"v_lshrrev_b32 v{POV}, 7, v0"); k(f"v_lshl_add_u32 v{ORD}, v{POV}, 2, v{ORD}")
        k(f"v_lshlrev_b32 v{POV}, 2, v0")
        k(f"s_mul_i32 s20, s{S_WAVE}, {WX_STRIDE}"); k(f"v_add_u32 v{WXR}, s20, v5")
        k(f"s_lshl_b32 s20, s{S_WAVE}, 11"); k(f"v_lshlrev_b32 v{ORW}, 7, v2"); k(f"v_add_u32 v{ORW}, s20, v{ORW}")
        k(f"v_lshrrev_b32 v{WXW}, 1, v2"); k(f"v_mul_u32_u24 v{WXW}, {WX_STRIDE}, v{WXW}")
        k(f"v_and_b32 v18, 1, v2"); k(f"v_lshl_add_u32 v{WXW}, v18, 7, v{WXW}"); k(f"v_lshl_add_u32 v{WXW}, v3, 8, v{WXW}")
        k(f"s_lshr_b32 s20, s{S_WAVE}, 1"); k("s_lshl_b32 s21, s20, 10"); k(f"s_and_b32 s22, s{S_WAVE}, 1"); k("s_lshl_b32 s22, s22, 3"); k("s_add_u32 s21, s21, s22")
        k(f"v_add_u32 v{WXW}, s21, v{WXW}")
        k("v_bfe_u32 v18, v2, 2, 1")
        k(f"v_lshlrev_b32 v{OLR}, 8, v18"); k(f"v_lshl_add_u32 v{OLR}, v3, 4, v{OLR}")
        k("s_lshl_b32 s20, s20, 6"); k("s_add_u32 s20, s20, s22"); k(f"v_add_u32 v{OLW}, s20, v{OLR}")
        k("v_and_b32 v19, 3, v2"); k("v_lshrrev_b32 v24, 3, v2"); k("v_lshl_add_u32 v19, v24, 2, v19")
        k(f"s_cmp_eq_u32 s{S_PBR}, 0"); k("s_cselect_b32 s22, 3, 12"); k("s_cselect_b32 s23, 0, 6")
        k(f"s_mul_i32 s21, s{S_X}, 30"); k("s_add_u32 s23, s23, s21")
        k("v_mul_lo_u32 v18, v18, s22"); k("v_add_u32 v18, s23, v18"); k("v_add_u32 v18, v18, v19")
        k("v_cmp_gt_u32 s[46:47], s22, v19")
        k("v_add_u32 v19, 8, v19")
        k("v_cmp_gt_u32 s[14:15], s22, v19")
        k(f"v_lshlrev_b32 v{T20}, 11, v18"); k(f"v_lshl_add_u32 v{T20}, v3, 4, v{T20}")
        k("v_mov_b32 v19, 0x80000000")
        k(f"v_add_u32 v{T21}, 0x4000, v{T20}")
        k(f"v_cndmask_b32 v{T20}, v19, v{T20}, s[46:47]")
        k(f"v_cndmask_b32 v{T21}, v19, v{T21}, s[14:15]")
        k(f"v_lshlrev_b32 v{OPV}, 10, v3"); k("v_lshrrev_b32 v19, 1, v2"); k(f"v_lshl_add_u32 v{OPV}, v19, 4, v{OPV}")
        k("v_lshlrev_b32 v19, 4, v0")
        k(f"v_add_u32 v19, {L_CST}, v19")
        k(f"ds_write_b128 v19, v[8:11]")
        k(f"ds_write_b128 v19, v[12:15] offset:8192")
        k(f"ds_write_b64 v19, v[16:17] offset:16384")

    def load_consts(self):
        k = self.k
        k("v_lshlrev_b32 v6, 4, v0"); k(f"v_add_u32 v6, {L_CST}, v6")
        k(f"ds_read_b128 v[{V_ORD}:{V_ORD+3}], v6")
        k(f"ds_read_b128 v[{V_T20}:{V_T20+3}], v6 offset:8192")
        k(f"ds_read_b64 v[{V_ORW}:{V_ORW+1}], v6 offset:16384")

    def nonce_ready(self):
        k = self.k
        k(f"s_cmp_eq_u32 s{S_PBR}, 0"); k(f"s_cselect_b32 s{S_TP1}, s68, s69")
        k(f"s_cmp_eq_u32 s{S_ABR}, 0"); k(f"s_cselect_b32 s{S_TA1}, s68, s69")
        k(f"s_add_u32 s{S_TP1}, s{S_TP1}, 1"); k(f"s_add_u32 s{S_TA1}, s{S_TA1}, 1")
        k(f"s_xor_b32 s{S_TP2}, s{S_TP1}, 0x{TAGX:x}"); k(f"s_xor_b32 s{S_TA2}, s{S_TA1}, 0x{TAGX:x}")
        k(f"s_lshl_b32 s{S_TB}, s{S_TP2}, 24")

    def kload(self, u, tiles=(0, 1)):
        k = self.k
        for t in tiles:
            k(f"s_add_u32 s20, s{S_KVOFF}, {u*8192 + t*4096}")
            for j in range(4):
                a = (u * 8 + t * 4 + j) * 4
                k(f"buffer_load_dwordx4 a[{a}:{a+3}], v5, s[{SRD_K}:{SRD_K+3}], s20 offen offset:{j*1024}{OPT.nt_kv}")

    def vload(self, u):
        k = self.k
        for i in range(8):
            if i % 4 == 0: k(f"s_add_u32 s20, s{S_KVOFF}, {u*8192 + (i//4)*4096}")
            r = 64 + (u * 8 + i) * 4
            k(f"buffer_load_dwordx4 v[{r}:{r+3}], v5, s[{SRD_V}:{SRD_V+3}], s20 offen offset:{(i&3)*1024}{OPT.nt_kv}")

    def wo_loads(self):
        k = self.k
        k("v_lshlrev_b32 v6, 12, v3"); k("v_lshl_add_u32 v6, v2, 4, v6")
        for e in range(4):
            k(f"buffer_load_dwordx4 v[{48+4*e}:{51+4*e}], v6, s[{SRD_WO}:{SRD_WO+3}], s{S_WOOFF} offen offset:{e*1024}{OPT.nt_w}")

    def qproj_compute(self):
        k = self.k
        for m in range(8):
            t = 34 + 2 * (m & 3)
            sel = f"s{S_SELLO}" if (m & 1) == 0 else f"s{S_SELHI}"
            q = m >> 1
            k(f"v_perm_b32 v{t}, v{52+q}, v{48+q}, {sel}")
            k(f"v_perm_b32 v{t+1}, v{60+q}, v{56+q}, {sel}")
            if m > 0:
                pm = m - 1; pt = 34 + 2 * (pm & 3)
                k(f"v_mfma_f32_16x16x16_bf16 v[{64+4*pm}:{67+4*pm}], v[{pt}:{pt+1}], v[32:33], 0")
        k("v_and_b32 v8, 1, v2"); k("v_lshlrev_b32 v8, 9, v8")
        k(f"v_mfma_f32_16x16x16_bf16 v[92:95], v[40:41], v[32:33], 0")
        k("v_bfe_u32 v9, v2, 1, 1"); k("v_lshl_add_u32 v8, v9, 8, v8")
        k("v_and_b32 v9, 1, v3"); k("v_lshl_add_u32 v8, v9, 7, v8")
        k(f"s_lshl_b32 s20, s{S_WAVE}, 10"); k("v_add_u32 v8, s20, v8")
        k("s_mov_b32 s20, 0x00050005"); k("s_mov_b32 s21, 0x000a000a")
        k("s_mov_b64 exec, s[20:21]")
        for m in range(8):
            k(f"ds_write2_b32 v8, v{64+4*m}, v{65+4*m} offset0:{m} offset1:{8+m}")
            k(f"ds_write2_b32 v8, v{66+4*m}, v{67+4*m} offset0:{16+m} offset1:{24+m}")
        k("s_mov_b64 exec, -1")
        k("s_waitcnt lgkmcnt(0)")
        self.nonce_ready()
        k(f"s_lshl_b32 s20, s{S_WAVE}, 2"); k(f"v_mov_b32 v8, s20"); k(f"v_mov_b32 v9, 1")
        k("s_mov_b64 exec, 1")
        k(f"ds_write_b32 v8, v9 offset:{L_FLG}")
        k("s_mov_b64 exec, -1")

    def q_reduce(self):
        k = self.k
        k(f"s_mov_b32 s{S_SPIN}, {SPIN_MAX}")
        k("v_and_b32 v6, 7, v1"); k("v_lshlrev_b32 v6, 2, v6")
        k.label("L_fw")
        k(f"ds_read_b32 v8, v6 offset:{L_FLG}")
        k("s_waitcnt lgkmcnt(0)")
        k(f"v_cmp_ne_u32 vcc, 1, v8"); k("s_nop 4")
        k("s_cbranch_vccz L_fok")
        self.spin_check("L_fw")
        k.label("L_fok")
        self.stamp(3)
        k("v_lshlrev_b32 v6, 3, v1")
        for j in range(16):
            k(f"ds_read_b64 v[{64+2*j}:{65+2*j}], v6 offset:{L_QRED + j*512}")
        k(f"v_mov_b32 v117, s{S_TP1}"); k(f"v_mov_b32 v119, s{S_TP2}")
        k(f"s_lshl_b32 s20, s{S_PBR}, 3"); k(f"s_add_u32 s20, s20, s{S_X}"); k("s_lshl_b32 s20, s20, 4")
        k("s_bfe_u32 s21, s2, 0x40003"); k("s_add_u32 s20, s20, s21")
        k(f"s_lshl_b32 s20, s20, 9"); k(f"s_add_u32 s4, s20, {WS_QP}"); k(f"s_add_u32 s20, s4, {WS_LOC}")
        st = 1
        while st < 16:
            if st == 1: k("s_waitcnt lgkmcnt(8)")
            for j in range(0, 16, 2 * st):
                if st == 1 and j == 8: k("s_waitcnt lgkmcnt(0)")
                for i in range(2):
                    k(f"v_add_f32 v{64+2*j+i}, v{64+2*j+i}, v{64+2*(j+st)+i}")
            st *= 2
        k("v_cvt_pk_bf16_f32 v116, v64, v65")
        k("v_mov_b32 v120, v6")
        k("s_nop 0")
        k("v_mov_b32_dpp v118, v116 quad_perm:[1,0,3,2] row_mask:0xf bank_mask:0xf")

    def q_store(self, glob):
        k = self.k
        k("s_mov_b32 exec_lo, 0x55555555"); k("s_mov_b32 exec_hi, 0x55555555")
        if glob: k(f"buffer_store_dwordx4 v[116:119], v120, {SRW}, s4 offen sc1")
        else: k(f"buffer_store_dwordx4 v[116:119], v120, {SRW}, s20 offen")
        k("s_mov_b64 exec, -1")

    def q_operand(self):
        k = self.k
        k("v_and_b32 v6, 3, v2"); k("v_lshlrev_b32 v6, 8, v6"); k("v_lshl_add_u32 v6, v3, 4, v6")
        for j in range(4):
            k(f"ds_read_b128 v[{32+4*j}:{35+4*j}], v6 offset:{L_QLDS + j*64}")

    def kt_addrs(self):
        k = self.k
        k(f"s_lshl_b32 s20, s{S_WAVE}, 12"); k(f"s_add_u32 s20, s20, {L_ORED}")
        k("v_lshlrev_b32 v56, 2, v3")
        k("v_lshlrev_b32 v57, 8, v2"); k("v_add_u32 v57, s20, v57")
        for a in range(4):
            k(f"v_or_b32 v58, {a}, v56")
            k(f"v_xor_b32 v59, v58, v2"); k("v_lshlrev_b32 v59, 4, v59")
            k(f"v_lshl_add_u32 v59, v58, 8, v59"); k(f"v_add_u32 v{48+a}, s20, v59")
        for j in range(4):
            k(f"v_or_b32 v58, {4*j}, v3")
            k(f"v_xor_b32 v58, v58, v2"); k(f"v_lshl_add_u32 v{52+j}, v58, 4, v57")

    def qk_all(self, units, vm_after):
        k = self.k
        tiles = [(u, t) for u in units for t in range(2)]
        def W(u, t):
            first = (u, t) == tiles[0]
            k(f"s_waitcnt vmcnt({vm_after(u, t)})" + (" lgkmcnt(0)" if first else ""))
            for a in range(4):
                r = (u * 8 + t * 4 + a) * 4
                k(f"ds_write_b128 v{48+a}, a[{r}:{r+3}]")
        def R(u, t):
            for j in range(4):
                r = (u * 8 + t * 4 + j) * 4
                k(f"ds_read_b128 a[{r}:{r+3}], v{52+j}")
        def M(u, t):
            s_ = 8 + u * 8 + t * 4
            for j in range(4):
                a = (u * 8 + t * 4 + j) * 4
                c = "0" if j == 0 else f"v[{s_}:{s_+3}]"
                k(f"v_mfma_f32_16x16x32_bf16 v[{s_}:{s_+3}], a[{a}:{a+3}], v[{32+4*j}:{35+4*j}], {c}")
        W(*tiles[0]); R(*tiles[0])
        for n in range(1, len(tiles)):
            W(*tiles[n])
            k("s_waitcnt lgkmcnt(4)")
            M(*tiles[n - 1])
            R(*tiles[n])
        k("s_waitcnt lgkmcnt(0)")
        M(*tiles[-1])

    def xlane_g(self, op, r, t):
        k = self.k
        k(f"v_mov_b32 v{t}, v{r}"); k("s_nop 1"); k(f"v_permlane32_swap_b32 v{r}, v{t}"); k(f"{op} v{r}, v{r}, v{t}")
        k(f"v_mov_b32 v{t}, v{r}"); k("s_nop 1"); k(f"v_permlane16_swap_b32 v{r}, v{t}"); k(f"{op} v{r}, v{r}, v{t}")

    def wave_slot_addr(self, r):
        k = self.k
        k(f"s_lshl_b32 s20, s{S_WAVE}, 4"); k(f"v_lshlrev_b32 v{r}, 2, v1"); k(f"v_add_u32 v{r}, s20, v{r}")

    def wave_softmax(self, nreg, vm, vl, vt):
        k = self.k
        self.wave_slot_addr(7)
        if nreg == 0:
            k(f"v_mov_b32 v{vm}, 0xff800000"); k(f"v_mov_b32 v{vl}, 0")
        else:
            k(f"v_max3_f32 v{vm}, v8, v9, v10")
            if nreg > 8:
                k(f"v_max3_f32 v{vt}, v11, v12, v13")
                i = 6; alt = 0
                while i + 1 < nreg:
                    r = vm if alt == 0 else vt
                    k(f"v_max3_f32 v{r}, v{r}, v{8+i}, v{9+i}"); i += 2; alt ^= 1
                k(f"v_max_f32 v{vm}, v{vm}, v{vt}")
            else:
                i = 3
                while i + 1 < nreg:
                    k(f"v_max3_f32 v{vm}, v{vm}, v{8+i}, v{9+i}"); i += 2
                if i < nreg: k(f"v_max_f32 v{vm}, v{vm}, v{8+i}")
            self.xlane_g("v_max_f32", vm, vt)
            k(f"v_mul_f32 v{vt}, s{S_SCALE}, v{vm}")
            for i in range(nreg): k(f"v_fma_f32 v{8+i}, v{8+i}, s{S_SCALE}, -v{vt}")
            for i in range(nreg): k(f"v_exp_f32 v{8+i}, v{8+i}")
            k(f"v_pk_add_f32 v[{vt+2}:{vt+3}], v[8:9], v[10:11]")
            k(f"v_pk_add_f32 v[{vt+4}:{vt+5}], v[12:13], v[14:15]")
            alt = 0
            for i in range(8, nreg, 2):
                r = vt + 2 + 2 * alt
                k(f"v_pk_add_f32 v[{r}:{r+1}], v[{r}:{r+1}], v[{8+i}:{9+i}]"); alt ^= 1
            k(f"v_pk_add_f32 v[{vt+2}:{vt+3}], v[{vt+2}:{vt+3}], v[{vt+4}:{vt+5}]")
            for w in range(nreg // 2):
                k(f"v_cvt_pk_bf16_f32 v{8+w}, v{8+2*w}, v{9+2*w}")
            k(f"v_add_f32 v{vl}, v{vt+2}, v{vt+3}")
            self.xlane_g("v_add_f32", vl, vt + 1)
        k("s_mov_b64 exec, 0xf")
        k(f"ds_write_b32 v7, v{vm} offset:{L_MX}")
        k(f"ds_write_b32 v7, v{vl} offset:{L_LS}")
        k("s_mov_b64 exec, -1")

    def wg_norm(self):
        k = self.k
        k(f"s_lshr_b32 s20, s{S_WAVE}, 1"); k("s_lshl_b32 s20, s20, 2")
        k("v_and_b32 v6, 7, v1"); k("v_lshlrev_b32 v6, 4, v6"); k("v_add_u32 v6, s20, v6")
        k(f"ds_read_b32 v{V_INVL}, v6 offset:{L_LS}")
        k(f"ds_read_b32 v7, v6 offset:{L_MX}")
        self.load_consts()
        k("s_waitcnt lgkmcnt(3)")
        k(f"v_mov_b32 v{V_LAM}, v7")
        k("s_nop 1")
        for ctl in ("quad_perm:[1,0,3,2]", "quad_perm:[2,3,0,1]", "row_half_mirror"):
            k(f"v_max_f32_dpp v{V_LAM}, v{V_LAM}, v{V_LAM} {ctl} row_mask:0xf bank_mask:0xf")
            k("s_nop 1")
        k(f"v_sub_f32 v7, v7, v{V_LAM}"); k(f"v_mul_f32 v7, s{S_SCALE}, v7"); k("v_exp_f32 v7, v7")
        k("s_nop 0")
        k(f"v_mul_f32 v{V_INVL}, v7, v{V_INVL}")
        k("s_nop 1")
        for ctl in ("quad_perm:[1,0,3,2]", "quad_perm:[2,3,0,1]", "row_half_mirror"):
            k(f"v_add_f32_dpp v{V_INVL}, v{V_INVL}, v{V_INVL} {ctl} row_mask:0xf bank_mask:0xf")
            k("s_nop 1")
        k(f"v_log_f32 v6, v{V_INVL}"); k(f"v_rcp_f32 v{V_INVL}, v{V_INVL}")
        k(f"s_and_b32 s20, s{S_TA2}, 0xff")
        k(f"v_fma_f32 v{V_LAM}, v{V_LAM}, s{S_SCALE}, v6")
        k(f"v_mul_f32 v7, v7, v{V_INVL}")
        k(f"v_and_b32 v{V_LAM}, 0xffffff00, v{V_LAM}"); k(f"v_or_b32 v{V_LAM}, s20, v{V_LAM}")
        for w in range(8):
            k(f"v_readlane_b32 s{GS[w]}, v7, {w}")

    def wait_q(self):
        k = self.k
        tag = self.uid()
        k(f"s_mov_b32 s{S_SPIN}, {SPIN_MAX * 50}")
        k("v_mov_b32 v6, 0")
        k.label(f"L_wq{tag}")
        k(f"ds_read_b32 v7, v6 offset:{L_FLG + 32}")
        k("s_waitcnt lgkmcnt(0)")
        k("v_cmp_ne_u32 vcc, 1, v7"); k("s_nop 4")
        k(f"s_cbranch_vccz L_wqok{tag}")
        self.spin_check(f"L_wq{tag}")
        k.label(f"L_wqok{tag}")

    def uid(self):
        self._uid = getattr(self, "_uid", 0) + 1
        return self._uid

    def pv(self, u, after, first):
        k = self.k
        k(f"s_waitcnt vmcnt({after})")
        base = 64 + u * 32
        pend = None
        for m in range(8):
            t = 32 + 4 * (m & 3)
            sel = f"s{S_SELLO}" if (m & 1) == 0 else f"s{S_SELHI}"
            q = m >> 1
            for w in range(4):
                k(f"v_perm_b32 v{t+w}, v{base + (2*w+1)*4 + q}, v{base + (2*w)*4 + q}, {sel}")
            if pend is not None: k(pend)
            c = "0" if first else f"a[{4*m}:{4*m+3}]"
            pend = f"v_mfma_f32_16x16x32_bf16 a[{4*m}:{4*m+3}], v[{8+4*u}:{11+4*u}], v[{t}:{t+3}], {c}"
        k("s_nop 1")
        k(pend)

    def o_to_lds(self, zero=False):
        k = self.k
        if zero:
            for i in range(4): k(f"v_mov_b32 v{32+i}, 0")
        k("s_waitcnt lgkmcnt(0)")
        k("s_mov_b64 exec, 0xffff")
        for m in range(8):
            src = "v[32:35]" if zero else f"a[{4*m}:{4*m+3}]"
            if m == 7 and not zero: k("s_nop 1")
            k(f"ds_write_b128 v{V_ORW}, {src} offset:{L_ORED + m*16}")
        k("s_mov_b64 exec, -1")
        k("s_waitcnt lgkmcnt(0)")

    def spin_check(self, retry_label):
        k = self.k
        k(f"s_sub_u32 s{S_SPIN}, s{S_SPIN}, 1")
        k(f"s_cmp_lg_u32 s{S_SPIN}, 0")
        k(f"s_cbranch_scc1 {retry_label}")
        k("s_branch L_end")

    def tagacc(self, acc, regs, t1, t2):
        k = self.k
        first = True
        for r in regs:
            for off, t in ((1, t1), (3, t2)):
                if first:
                    k(f"v_xor_b32 v{acc}, s{t}, v{r+off}"); first = False
                else:
                    k(f"v_bitop3_b32 v{acc}, v{r+off}, s{t}, v{acc} bitop3:0xbe")

    def q_round(self, tag):
        k = self.k
        k(f"s_and_b32 s20, s{S_SPIN}, {QMASK}"); k("s_cmp_eq_u32 s20, 0"); k(f"s_cselect_b32 s20, {WS_LOC}, 0")
        k("s_sub_u32 s21, s23, s20"); k("s_sub_u32 s20, s22, s20")
        k(f"buffer_load_dwordx4 v[96:99], v6, {SRW}, s21 offen sc1")
        k(f"buffer_load_dwordx4 v[100:103], v6, {SRW}, s21 offen offset:512 sc1")
        k(f"buffer_load_dwordx4 v[104:107], v6, {SRW}, s20 offen sc1")
        k(f"buffer_load_dwordx4 v[108:111], v6, {SRW}, s20 offen offset:512 sc1")
        k("s_waitcnt vmcnt(0)")
        self.tagacc(8, [96, 100, 104, 108], S_TA1, S_TA2)
        k("v_cmp_ne_u32 vcc, 0, v8"); k("s_nop 4")

    def helper_qpoll(self):
        k = self.k
        k(f"s_lshl_b32 s21, s{S_ABR}, 3"); k(f"s_add_u32 s20, s{S_X}, s21")
        k(f"s_lshl_b32 s23, s20, 13"); k(f"s_lshr_b32 s21, s{S_PAIR}, 3"); k("s_lshl_b32 s21, s21, 8")
        k("s_add_u32 s23, s23, s21"); k(f"s_add_u32 s23, s23, {WS_QP + WS_LOC}")
        k("s_add_u32 s22, s23, 4096")
        k("v_lshrrev_b32 v6, 4, v1"); k("v_lshlrev_b32 v6, 10, v6"); k("v_lshl_add_u32 v6, v2, 4, v6")
        k(f"s_mov_b32 s{S_SPIN}, {SPIN_MAX}")
        self.q_round("a")
        self.stamp(4)
        k("s_cbranch_vccz L_qearly")
        k(f"s_sub_u32 s{S_SPIN}, s{S_SPIN}, 1")
        self.q_round("b")
        k("s_cbranch_vccz L_qearly")
        self.q_store(True)
        k(f"s_sub_u32 s{S_SPIN}, s{S_SPIN}, 1")
        k.label("L_qd")
        self.q_round("c")
        k("s_cbranch_vccz L_qdok")
        self.spin_check("L_qd")
        k.label("L_qearly")
        self.q_store(True)
        k.label("L_qdok")
        self.stamp(5)
        if OPT.stamps: k(f"s_sub_u32 s{S_STAMP+2*13}, {SPIN_MAX}, s{S_SPIN}")
        k("s_mov_b32 s20, 0xffff0000")
        for ip in range(2):
            a = 96 + ip * 8; b = a + 4
            for d in (0, 2):
                k(f"v_lshlrev_b32 v8, 16, v{a+d}"); k(f"v_lshlrev_b32 v9, 16, v{b+d}")
                k(f"v_and_b32 v10, s20, v{a+d}"); k(f"v_and_b32 v11, s20, v{b+d}")
                k("v_add_f32 v8, v8, v9"); k("v_add_f32 v10, v10, v11")
                k(f"v_cvt_pk_bf16_f32 v{112 + ip*2 + d//2}, v8, v10")
        k("v_lshlrev_b32 v6, 3, v1")
        k(f"ds_write_b64 v6, v[112:113] offset:{L_QLDS}")
        k(f"ds_write_b64 v6, v[114:115] offset:{L_QLDS + 512}")
        k("v_mov_b32 v8, 0"); k("v_mov_b32 v9, 1")
        k("s_waitcnt lgkmcnt(0)")
        k(f"ds_write_b32 v8, v9 offset:{L_FLG + 32}")

    def publish_po(self):
        k = self.k
        for w in range(8):
            k(f"ds_read_b32 v{8+w}, v{V_ORD} offset:{L_ORED + w*2048}")
        k(f"v_mov_b32 v18, v{V_LAM}"); k(f"v_mov_b32 v19, s{S_TA1}")
        k(f"s_add_u32 s22, s{S_POOFF}, {WS_LOC}")
        k("s_waitcnt lgkmcnt(4)")
        k(f"v_mul_f32 v8, s{GS[0]}, v8"); k(f"v_mul_f32 v9, s{GS[1]}, v9")
        k(f"v_fma_f32 v8, v10, s{GS[2]}, v8"); k(f"v_fma_f32 v9, v11, s{GS[3]}, v9")
        k("s_waitcnt lgkmcnt(0)")
        k(f"v_fma_f32 v8, v12, s{GS[4]}, v8"); k(f"v_fma_f32 v9, v13, s{GS[5]}, v9")
        k(f"v_fma_f32 v8, v14, s{GS[6]}, v8"); k(f"v_fma_f32 v9, v15, s{GS[7]}, v9")
        k("v_add_f32 v8, v8, v9")
        k("s_mov_b32 s20, 0x11111111"); k("s_mov_b32 s21, 0x11111111")
        k("v_mov_b32_dpp v9, v8 quad_perm:[1,0,3,2] row_mask:0xf bank_mask:0xf")
        k("v_cvt_pk_bf16_f32 v16, v8, v9")
        k("s_nop 1")
        k("v_mov_b32_dpp v17, v16 quad_perm:[2,3,0,1] row_mask:0xf bank_mask:0xf")
        k("s_mov_b64 exec, s[20:21]")
        k(f"buffer_store_dwordx4 v[16:19], v{V_POV}, {SRW}, s22 offen")
        k(f"buffer_store_dwordx4 v[16:19], v{V_POV}, {SRW}, s{S_POOFF} offen sc1")
        k("s_mov_b64 exec, -1")

    def t2_loads(self, so=None):
        k = self.k
        so = so or f"s{S_T2OFF}"
        k(f"buffer_load_dwordx4 v[96:99], v{V_T20}, {SRW}, {so} offen sc1")
        k(f"buffer_load_dwordx4 v[100:103], v{V_T21}, {SRW}, {so} offen sc1")

    def wo_exchange(self, t2=False):
        k = self.k
        for m in range(8):
            t = 32 + 2 * m
            sel = f"s{S_SELLO}" if (m & 1) == 0 else f"s{S_SELHI}"
            q = m >> 1
            k(f"v_perm_b32 v{t}, v{52+q}, v{48+q}, {sel}")
            k(f"v_perm_b32 v{t+1}, v{60+q}, v{56+q}, {sel}")
            k(f"ds_write_b64 v{V_WXW}, v[{32+2*m}:{33+2*m}] offset:{L_WX + m*16}")
        if t2: self.t2_loads()
        k("s_waitcnt lgkmcnt(0)")

    def t2_t3(self):
        k = self.k
        for j in range(4):
            k(f"ds_read_b128 v[{64+4*j}:{67+4*j}], v{V_WXR} offset:{L_WX + j*1024}")
        k(f"v_mov_b32 v13, s{S_TP1}"); k(f"v_mov_b32 v15, s{S_TP2}")
        k(f"s_mov_b32 s{S_SPIN}, {SPIN_MAX}")
        self.stamp(10)
        k("s_branch L_t2w")
        k.label("L_t2")
        k(f"s_and_b32 s20, s{S_SPIN}, {TMASK}"); k("s_cmp_eq_u32 s20, 0"); k(f"s_cselect_b32 s20, {WS_LOC}, 0")
        k(f"s_sub_u32 s20, s{S_T2OFF}, s20")
        self.t2_loads("s20")
        k.label("L_t2w")
        k("s_waitcnt vmcnt(0)")
        k("v_lshlrev_b32 v8, 24, v98"); k("v_lshlrev_b32 v9, 24, v102")
        k(f"v_xor_b32 v8, s{S_TB}, v8"); k(f"v_xor_b32 v9, s{S_TB}, v9")
        k(f"v_bitop3_b32 v8, v99, s{S_TP1}, v8 bitop3:0xbe"); k(f"v_bitop3_b32 v9, v103, s{S_TP1}, v9 bitop3:0xbe")
        k("v_cmp_ne_u32 vcc, 0, v8"); k("v_cmp_ne_u32 s[20:21], 0, v9")
        k("v_mov_b32 v10, 0xff800000")
        k("s_nop 2")
        k("s_and_b64 vcc, vcc, s[46:47]"); k("s_and_b64 s[20:21], s[20:21], s[14:15]")
        k("s_or_b64 vcc, vcc, s[20:21]")
        k("s_cbranch_scc0 L_t2ok")
        self.spin_check("L_t2")
        k.label("L_t2ok")
        self.stamp(11)
        if OPT.stamps: k(f"s_sub_u32 s{S_STAMP+2*15}, {SPIN_MAX}, s{S_SPIN}")
        k("s_mov_b32 s20, 0xffff0000")
        k("v_cndmask_b32 v98, v10, v98, s[46:47]"); k("v_cndmask_b32 v102, v10, v102, s[14:15]")
        k("v_max_f32 v8, v98, v102")
        k("v_lshlrev_b32 v104, 16, v96"); k("v_and_b32 v105, s20, v96")
        k("v_max_f32_dpp v8, v8, v8 quad_perm:[1,0,3,2] row_mask:0xf bank_mask:0xf")
        k("v_lshlrev_b32 v106, 16, v97"); k("v_and_b32 v107, s20, v97")
        k("v_max_f32_dpp v8, v8, v8 quad_perm:[2,3,0,1] row_mask:0xf bank_mask:0xf")
        k("v_lshlrev_b32 v108, 16, v100"); k("v_and_b32 v109, s20, v100")
        k("v_max_f32_dpp v8, v8, v8 row_ror:8 row_mask:0xf bank_mask:0xf")
        k("v_lshlrev_b32 v110, 16, v101"); k("v_and_b32 v111, s20, v101")
        k("v_sub_f32 v98, v98, v8"); k("v_sub_f32 v102, v102, v8")
        k("v_exp_f32 v98, v98"); k("v_exp_f32 v102, v102"); k("s_nop 0")
        k("v_add_f32 v114, v98, v102")
        p0 = (104, 105, 106, 107); p1 = (108, 109, 110, 111)
        for i in range(4): k(f"v_mul_f32 v{p0[i]}, v98, v{p0[i]}")
        for i in range(4): k(f"v_fma_f32 v{p0[i]}, v102, v{p1[i]}, v{p0[i]}")
        for ctl in ("quad_perm:[1,0,3,2]", "quad_perm:[2,3,0,1]", "row_ror:8"):
            for r in (114,) + p0:
                k(f"v_add_f32_dpp v{r}, v{r}, v{r} {ctl} row_mask:0xf bank_mask:0xf")
        k("v_rcp_f32 v114, v114"); k("s_mov_b32 s20, 0x00110011")
        for r in p0: k(f"v_mul_f32 v{r}, v114, v{r}")
        k("v_cvt_pk_bf16_f32 v96, v104, v105"); k("v_cvt_pk_bf16_f32 v97, v106, v107")
        k("s_mov_b32 exec_lo, s20"); k("s_mov_b32 exec_hi, s20")
        k(f"ds_write_b64 v{V_OLW}, v[96:97] offset:{L_OLDS}")
        k("s_mov_b64 exec, -1")
        k("s_waitcnt lgkmcnt(0)")
        k("s_barrier")
        for j in range(4):
            k(f"ds_read_b128 v[{80+4*j}:{83+4*j}], v{V_OLR} offset:{L_OLDS + j*64}")
        for j in range(4):
            k(f"s_waitcnt lgkmcnt({3-j})")
            c = "0" if j == 0 else "v[8:11]"
            k(f"v_mfma_f32_16x16x32_bf16 v[8:11], v[{80+4*j}:{83+4*j}], v[{64+4*j}:{67+4*j}], {c}")
        k("s_mov_b32 s20, 0x55555555"); k("s_mov_b32 s21, 0")
        k("s_nop 5")
        k("v_mov_b32 v12, v8")
        k("v_mov_b32_dpp v14, v8 quad_perm:[1,0,3,2] row_mask:0xf bank_mask:0xf")
        k("s_mov_b64 exec, s[20:21]")
        k(f"buffer_store_dwordx4 v[12:15], v{V_OPV}, {SRW}, s{S_OPOFF} offen sc1")
        k("s_mov_b64 exec, -1")
        self.stamp(12)

    def t4_consts(self):
        k = self.k
        k(f"s_lshr_b32 s21, s{S_X}, 1"); k(f"s_lshl_b32 s22, s{S_PBR}, 2"); k("s_add_u32 s21, s21, s22")
        k(f"s_and_b32 s22, s{S_X}, 1")
        k("s_lshl_b32 s23, s21, 16"); k("s_lshl_b32 s4, s22, 10"); k("s_add_u32 s23, s23, s4")
        k(f"s_lshl_b32 s4, s{S_WAVE}, 7"); k("s_add_u32 s23, s23, s4"); k(f"s_add_u32 s69, s23, {WS_OP}")
        k("s_add_u32 s3, s69, 16384"); k("s_add_u32 s4, s69, 32768"); k("s_add_u32 s5, s69, 49152")
        k("v_lshrrev_b32 v122, 3, v1"); k("v_lshlrev_b32 v122, 11, v122"); k("v_and_b32 v123, 7, v1"); k("v_lshl_add_u32 v122, v123, 4, v122")
        k("s_lshl_b32 s22, s22, 11"); k("s_lshl_b32 s21, s21, 8"); k("s_add_u32 s22, s22, s21")
        k(f"s_lshl_b32 s21, s{S_WAVE}, 5"); k("s_add_u32 s10, s22, s21")
        k("v_lshlrev_b32 v123, 2, v1")

    def t4_issue(self, base):
        k = self.k
        for i, so in enumerate(("s69", "s3", "s4", "s5")):
            k(f"buffer_load_dwordx4 v[{base+4*i}:{base+3+4*i}], v122, {SRW}, {so} offen sc1")

    def t4(self):
        k = self.k
        n = OPT.t4sets
        bases = [32 + 16 * i for i in range(n)]
        k(f"s_mov_b32 s{S_SPIN}, {SPIN_MAX}")
        for b in bases: self.t4_issue(b)
        k.label("L_t4")
        for i, b in enumerate(bases):
            k(f"s_waitcnt vmcnt({4*(n-1)})")
            self.tagacc(8, [b, b + 4, b + 8, b + 12], S_TP1, S_TP2)
            k("v_cmp_ne_u32 vcc, 0, v8"); k("s_nop 4")
            k(f"s_cbranch_vccz L_t4ok{i}")
            self.t4_issue(b)
        self.spin_check("L_t4")
        for i, b in enumerate(bases):
            k.label(f"L_t4ok{i}")
            k(f"v_add_f32 v8, v{b}, v{b+4}"); k(f"v_add_f32 v9, v{b+2}, v{b+6}"); k(f"v_add_f32 v10, v{b+8}, v{b+12}"); k(f"v_add_f32 v11, v{b+10}, v{b+14}")
            if i < n - 1: k("s_branch L_t4sum")
        k.label("L_t4sum")
        self.stamp(13)
        k("v_add_f32 v8, v8, v10"); k("v_add_f32 v9, v9, v11")
        k("s_nop 1")
        k("v_add_f32_dpp v8, v8, v8 row_ror:8 row_mask:0xf bank_mask:0xf"); k("v_add_f32_dpp v9, v9, v9 row_ror:8 row_mask:0xf bank_mask:0xf")
        for sw in ("v_permlane16_swap_b32", "v_permlane32_swap_b32"):
            k("v_mov_b32 v10, v8"); k("v_mov_b32 v11, v9"); k("s_nop 1")
            k(f"{sw} v8, v10"); k(f"{sw} v9, v11")
            k("v_add_f32 v8, v8, v10"); k("v_add_f32 v9, v9, v11")
        k("v_cvt_pk_bf16_f32 v8, v8, v9")
        k("s_mov_b64 exec, 0xff")
        k(f"buffer_store_dword v8, v123, s[{SRD_OUT}:{SRD_OUT+3}], s10 offen")
        k("s_mov_b64 exec, -1")

    def dump_stamps(self, n=16):
        if not OPT.stamps: return
        k = self.k
        k("s_waitcnt lgkmcnt(0)")
        k("v_mov_b32 v8, 0")
        for i in range(n):
            k(f"v_writelane_b32 v8, s{S_STAMP+2*i}, {i}")
        k(f"s_lshl_b32 s20, s2, 3"); k(f"s_add_u32 s20, s20, s{S_WAVE}"); k("s_lshl_b32 s20, s20, 6"); k(f"s_add_u32 s20, s20, {WS_ST}")
        k("v_lshlrev_b32 v9, 2, v1")
        k("s_mov_b64 exec, 0xffff")
        k(f"buffer_store_dword v8, v9, {SRW}, s20 offen")
        k("s_mov_b64 exec, -1")

    def build_stream(self):
        k = self.k
        self.prologue()
        k("s_barrier")
        self.setup2()
        if OPT.kcontig == 1: k("v_mov_b32 v4, v5")
        if OPT.kcontig == 2:
            k("v_lshrrev_b32 v4, 2, v1"); k("v_lshlrev_b32 v4, 8, v4"); k("v_and_b32 v6, 3, v1"); k("v_lshl_add_u32 v4, v6, 4, v4")
        if OPT.kcontig == 3:
            k("v_lshrrev_b32 v4, 3, v1"); k("v_lshlrev_b32 v4, 8, v4"); k("v_and_b32 v6, 7, v1"); k("v_lshl_add_u32 v4, v6, 4, v4")
        self.setup3()
        k(f"s_cmp_lg_u32 s{S_SPARE}, 0"); k("s_cbranch_scc1 L_s_wo")
        k(f"s_cmp_eq_u32 s{S_WAVE}, 7"); k("s_cbranch_scc1 L_s_h")
        k("s_waitcnt vmcnt(0)")
        k("s_setprio 1")
        def kl(u):
            if not OPT.kcontig: return self.kload(u)
            for t in range(2):
                k(f"s_add_u32 s20, s{S_KVOFF}, {u*8192 + t*4096}")
                for j in range(4):
                    a = (u * 8 + t * 4 + j) * 4
                    off = {1: j*1024, 2: j*64, 3: (j&1)*128 + (j>>1)*2048}[OPT.kcontig]
                    k(f"buffer_load_dwordx4 a[{a}:{a+3}], v4, s[{SRD_K}:{SRD_K+3}], s20 offen offset:{off}{OPT.nt_kv}")
        kl(0); kl(1); kl(2)
        self.vload(0); self.vload(1); self.vload(2)
        k("s_branch L_s_wo")
        k.label("L_s_h")
        k(f"s_cmp_lg_u32 s{S_THIRD}, 0"); k("s_cbranch_scc1 L_s_wo")
        kl(0); self.vload(0)
        k.label("L_s_wo")
        k("s_setprio 0")
        self.wo_loads()
        k("s_waitcnt vmcnt(0)")
        k("s_barrier")
        k(f"s_cmp_lg_u32 s{S_WAVE}, 0"); k("s_cbranch_scc1 L_end")
        k("s_lshr_b32 s3, s2, 3")
        k("s_memrealtime s[72:73]")
        k("s_load_dwordx2 s[20:21], s[0:1], 88")
        k("s_waitcnt lgkmcnt(0)")
        srd(k, 76, 20, 21, 256)
        k(f"s_lshl_b32 s10, s{S_X}, 2")
        k("v_mov_b32 v9, 0")
        k("s_mov_b64 exec, 1")
        k("s_add_u32 s5, s10, 32"); k("v_mov_b32 v8, s72")
        k("buffer_atomic_umax v8, v9, s[76:79], s5 offen")
        k("s_cmp_lg_u32 s3, 0"); k("s_cbranch_scc1 L_end")
        k("v_mov_b32 v10, s70")
        k("buffer_store_dword v10, v9, s[76:79], s10 offen")
        k.label("L_end")
        k("s_endpgm")
        return k.text()

    def build(self):
        k = self.k
        if OPT.stamps:
            for i in range(16):
                k(f"s_mov_b32 s{S_STAMP+2*i}, 0")
        self.prologue()
        k("s_barrier")
        self.setup2()
        k("v_mov_b32 v122, 0"); k("v_mov_b32 v123, 0")
        k(f"s_cmp_lg_u32 s{S_SPARE}, 0"); k("s_cbranch_scc1 L_light")
        k(f"s_cmp_eq_u32 s{S_WAVE}, 7"); k("s_cbranch_scc1 L_light")
        k("s_setprio 2")
        npre = 4 * OPT.pre_k
        if OPT.pre_k: self.kload(0, tuple(range(OPT.pre_k)))
        self.setup3()
        k(f"s_waitcnt vmcnt({npre})")
        self.stamp(2)
        self.qproj_compute()
        self.stamp(3)
        if OPT.kfirst: k("s_setprio 2")
        else: k("s_setprio 1")
        if OPT.pre_k < 2: self.kload(0, tuple(range(OPT.pre_k, 2)))
        self.kload(1); self.kload(2)
        k("s_setprio 1")
        self.vload(0); self.vload(1); self.vload(2)
        self.kt_addrs()
        self.stamp(4)
        self.wait_q()
        self.stamp(5)
        self.q_operand()
        self.qk_all([0, 1, 2], lambda u, t: 24 + (2 - u) * 8 + (4 if t == 0 else 0))
        k("s_nop 7")
        self.stamp(6)
        self.wave_softmax(24, 44, 45, 32)
        self.stamp(7)
        self.pv(0, 16, True); self.pv(1, 8, False)
        k(f"s_cmp_ge_u32 s{S_WAVE}, 4"); k("s_cbranch_scc1 L_young")
        self.pv(2, 0, False)
        k("s_setprio 0")
        self.wo_loads()
        k("s_waitcnt lgkmcnt(0)")
        k("s_barrier")
        self.wg_norm()
        self.stamp(8)
        self.o_to_lds()
        k("s_branch L_D")
        k.label("L_young")
        k("s_setprio 0")
        self.wo_loads()
        k("s_waitcnt lgkmcnt(0)")
        k("s_barrier")
        self.wg_norm()
        self.stamp(8)
        self.pv(2, 4, False)
        k("s_nop 5")
        self.o_to_lds()
        k("s_branch L_D")
        k.label("L_light")
        self.setup3()
        if OPT.touch:
            k("v_mov_b32 v8, 0")
            k("s_mov_b64 exec, 1")
            k(f"s_cmp_lg_u32 s{S_SPARE}, 0"); k("s_cbranch_scc1 L_nov")
            k(f"buffer_load_dword v9, v8, s[{SRD_V}:{SRD_V+3}], s{S_KVOFF} offen")
            k.label("L_nov")
            k(f"buffer_load_dword v10, v8, s[{SRD_WO}:{SRD_WO+3}], s{S_WOOFF} offen")
            k(f"buffer_load_dword v11, v8, {SRW}, s{S_OPOFF} offen")
            k(f"buffer_load_dword v12, v8, s[{SRD_OUT}:{SRD_OUT+3}], 0 offen")
            k("s_mov_b64 exec, -1")
        k("s_waitcnt vmcnt(0)")
        self.stamp(2)
        self.qproj_compute()
        k(f"s_cmp_lg_u32 s{S_WAVE}, 7"); k("s_cbranch_scc1 L_spare_rest")
        self.q_reduce()
        self.q_store(False)
        k(f"s_cmp_lg_u32 s{S_SPARE}, 0"); k("s_cbranch_scc1 L_spare_h")
        k(f"s_cmp_lg_u32 s{S_THIRD}, 0"); k("s_cbranch_scc1 L_h_nok")
        self.kload(0)
        k.label("L_h_nok")
        self.helper_qpoll()
        self.stamp(6)
        k(f"s_cmp_lg_u32 s{S_THIRD}, 0"); k("s_cbranch_scc1 L_h_nounit")
        self.vload(0)
        self.kt_addrs()
        k("s_waitcnt lgkmcnt(0)")
        self.q_operand()
        self.qk_all([0], lambda u, t: 63)
        k("s_nop 7")
        self.wave_softmax(8, 44, 45, 32)
        self.pv(0, 0, True)
        k("s_setprio 0")
        self.wo_loads()
        k("s_waitcnt lgkmcnt(0)")
        k("s_barrier")
        self.wg_norm()
        self.o_to_lds()
        k("s_branch L_D")
        k.label("L_h_nounit")
        self.wave_softmax(0, 44, 45, 32)
        k("s_setprio 0")
        self.wo_loads()
        k("s_waitcnt lgkmcnt(0)")
        k("s_barrier")
        self.wg_norm()
        self.o_to_lds(zero=True)
        k.label("L_D")
        k("s_barrier")
        self.stamp(9)
        self.publish_po()
        if OPT.t2late:
            k("s_waitcnt vmcnt(2)")
        else:
            self.t2_loads()
            k("s_waitcnt vmcnt(4)")
        k("s_branch L_join")
        k.label("L_spare_h")
        self.q_store(True)
        k.label("L_spare_rest")
        self.wo_loads()
        self.load_consts()
        self.t4_consts()
        k("s_waitcnt lgkmcnt(0)")
        if OPT.t2late:
            k("s_waitcnt vmcnt(0)")
        else:
            self.t2_loads()
            k("s_waitcnt vmcnt(2)")
        k.label("L_join")
        self.wo_exchange(t2=OPT.t2late)
        k("s_barrier")
        self.t2_t3()
        k(f"s_cmp_eq_u32 s{S_SPARE}, 0"); k("s_cbranch_scc1 L_fin")
        self.t4()
        self.stamp(14)
        k(f"s_or_b32 s20, s{S_X}, s{S_WAVE}"); k("s_cmp_lg_u32 s20, 0"); k("s_cbranch_scc1 L_fin")
        k(f"v_mov_b32 v8, s{S_TP1}"); k("v_mov_b32 v9, 0"); k(f"s_lshl_b32 s20, s{S_PBR}, 7")
        k("s_mov_b64 exec, 1")
        k(f"buffer_store_dword v8, v9, {SRW}, s20 offen")
        k("s_mov_b64 exec, -1")
        k.label("L_fin")
        if OPT.dbg:
            k(f"s_cmp_lg_u32 s{S_WAVE}, 0"); k("s_cbranch_scc1 L_end")
            k("s_lshr_b32 s3, s2, 3")
            k("s_memrealtime s[72:73]")
            k("s_load_dwordx2 s[20:21], s[0:1], 88")
            k("s_waitcnt lgkmcnt(0)")
            srd(k, 76, 20, 21, 256)
            k("s_cmp_eq_u32 s3, 0"); k("s_cselect_b32 s4, s70, s72"); k("s_cselect_b32 s5, 0, 32")
            k("s_cmp_eq_u32 s3, 0"); k("s_cbranch_scc1 L_dbgw")
            k("s_cmp_eq_u32 s3, 31"); k("s_cbranch_scc0 L_end")
            k.label("L_dbgw")
            k(f"s_lshl_b32 s10, s{S_X}, 2"); k("s_add_u32 s5, s5, s10")
            k("v_mov_b32 v8, s4"); k("v_mov_b32 v9, 0")
            k("s_mov_b64 exec, 1")
            k("buffer_store_dword v8, v9, s[76:79], s5 offen")
            k("s_mov_b64 exec, -1")
        self.dump_stamps()
        k.label("L_end")
        k("s_endpgm")
        return k.text()

def build():
    body = Gen().build_stream() if OPT.stream else Gen().build()
    name = NAME + "_kernel"
    hdr = f"""; @launch grid=(256,1,1) block=(512,1,1) lds={LDS_SIZE}
.amdgcn_target "amdgcn-amd-amdhsa--gfx950"
.text
.globl {name}
.p2align 8
.type {name},@function
{name}:
"""
    kd = f""".section .rodata,"a"
.p2align 6
.amdhsa_kernel {name}
  .amdhsa_next_free_vgpr 256
  .amdhsa_next_free_sgpr 102
  .amdhsa_accum_offset 160
  .amdhsa_group_segment_fixed_size 0
  .amdhsa_kernarg_size 104
  .amdhsa_user_sgpr_count 2
  .amdhsa_user_sgpr_kernarg_segment_ptr 1
  .amdhsa_system_sgpr_workgroup_id_x 1
.end_amdhsa_kernel
"""
    return hdr + body + kd

if __name__ == "__main__":
    for a in sys.argv[2:]:
        if a == "stamps": OPT.stamps = True
        if a == "nont": OPT.nt_kv = ""; OPT.nt_w = ""
        if a.startswith("prek"): OPT.pre_k = int(a[4:])
        if a == "touch": OPT.touch = 1
        if a == "stream": OPT.stream = 1; OPT.dbg = 1
        if a.startswith("kcontig"): OPT.kcontig = int(a[7:] or 1)
        if a.startswith("kvf="): OPT.nt_kv = " " + a[4:].replace("+", " ") if a[4:] else ""
        if a == "t2late": OPT.t2late = 1
        if a == "kfirst": OPT.kfirst = 1
        if a.startswith("ord"): OPT.order = int(a[3:])
        if a == "dbg": OPT.dbg = 1
        if a.startswith("t4s"): OPT.t4sets = int(a[3:])
    open(sys.argv[1], "w").write(build())
```
